```python
import torch

def _softmax(x, axis=-1):
    return torch.softmax(x, dim=axis)

def _gelu(x):
    return torch.nn.functional.gelu(x, approximate='tanh')

def _silu(x):
    return torch.nn.functional.silu(x)

def _sigmoid(x):
    return torch.sigmoid(x)

def _layernorm(x, axis=-1, eps=1e-05):
    m = x.mean(dim=axis, keepdim=True)
    v = x.var(dim=axis, keepdim=True, unbiased=False)
    return (x - m) / torch.sqrt(v + eps)

def _scatter_add(tgt, idx, src, axis=0):
    return tgt.clone().index_add_(axis, idx, src)

def _segment_sum(src, seg, n):
    out = torch.zeros((n,) + src.shape[1:], dtype=src.dtype)
    return out.index_add_(0, seg, src)

def _pad(x, pw):
    flat = tuple((v for pair in reversed(pw) for v in pair))
    return torch.nn.functional.pad(x, flat)
kernel_name = 'sequential_preLN__spectral_gfnet__mixer_gmlp__prompt'

def setup_inputs():

    _w = lambda a: (lambda t: t.to(torch.bfloat16) if t.is_floating_point() else t)(torch.as_tensor(a))

    def _A_setup():
        B, S, D = (1, 2048, 512)
        Df = D // 2 + 1
        return {'x': _w((lambda *s: torch.randn(*s, dtype=torch.bfloat16) * 0.05)(B, S, D)), 'w_r': _w((lambda *s: torch.randn(*s, dtype=torch.bfloat16) * 0.4)(S, Df) * 0.02), 'w_i': _w((lambda *s: torch.randn(*s, dtype=torch.bfloat16) * 0.4)(S, Df) * 0.02)}
    _A_in = _A_setup()

    def _B_setup():
        B, S, D, F = (1, 2048, 512, 1376)
        Fh = F // 2
        return {'x': _w((lambda *s: torch.randn(*s, dtype=torch.bfloat16) * 0.05)(B, S, D)), 'w_in': _w((lambda *s: torch.randn(*s, dtype=torch.bfloat16) * 0.4)(D, 2 * Fh)), 'w_sp': _w(0.01 * (lambda *s: torch.randn(*s, dtype=torch.bfloat16) * 0.4)(S, S)), 'b_sp': _w(1.0 + 0.01 * (lambda *s: torch.randn(*s, dtype=torch.bfloat16) * 0.05)(S)), 'w_out': _w((lambda *s: torch.randn(*s, dtype=torch.bfloat16) * 0.05)(Fh, D))}
    _B_in = _B_setup()
    return {'A_x': _A_in['x'], 'A_w_r': _A_in['w_r'], 'A_w_i': _A_in['w_i'], 'B_x': _B_in['x'], 'B_w_in': _B_in['w_in'], 'B_w_sp': _B_in['w_sp'], 'B_b_sp': _B_in['b_sp'], 'B_w_out': _B_in['w_out']}

def reference(A_x, A_w_r, A_w_i, B_x, B_w_in, B_w_sp, B_b_sp, B_w_out):

    def _A_ref(x, w_r, w_i):
        B, S, D = x.shape
        X = (lambda x, axes=(-2, -1): torch.fft.rfft2(x.float(), dim=axes))(x, axes=(-2, -1))
        W = w_r + 1j * w_i
        X = X * W
        y = (lambda x, s, axes=(-2, -1): torch.fft.irfft2(x, s=s, dim=axes).to(torch.bfloat16))(X, (S, D), axes=(-2, -1))
        return y

    def _B_ref(x, w_in, w_sp, b_sp, w_out):
        B, S, D = x.shape
        F = w_in.shape[-1]
        Fh = F // 2
        z = _gelu(torch.einsum('bsd,df->bsf', x, w_in))
        z1 = z[..., :Fh].clone()
        z2 = _layernorm(z[..., Fh:], axis=-1)
        g = torch.einsum('ts,bsf->btf', w_sp, z2) + b_sp[None, :, None]
        return torch.einsum('bsf,fd->bsd', z1 * g, w_out)
    x = A_x
    h = x + _A_ref(_layernorm(x, axis=-1), A_w_r, A_w_i)
    h2 = h + _B_ref(_layernorm(h, axis=-1), B_w_in, B_w_sp, B_b_sp, B_w_out)
    return h2
```

```python
import re

REG_RE = re.compile(r'(?<![\w.])([vas])(?:(\d+)|\[(\d+):(\d+)\])(?![\w])')
def regs_of(tok):
    out = []
    for m in REG_RE.finditer(tok):
        k = m.group(1)
        if m.group(2) is not None: out.append((k, int(m.group(2))))
        else: out += [(k, i) for i in range(int(m.group(3)), int(m.group(4)) + 1)]
    t = tok.strip()
    if re.search(r'\bvcc\b', t): out += [('s', 106), ('s', 107)]
    if re.search(r'\bvcc_lo\b', t): out += [('s', 106)]
    if re.search(r'\bvcc_hi\b', t): out += [('s', 107)]
    if re.search(r'\bexec\b', t): out += [('s', 126), ('s', 127)]
    if re.search(r'\bm0\b', t): out += [('s', 124)]
    return out

TRANS = ('v_exp_f32', 'v_log_f32', 'v_rcp_f32', 'v_rsq_f32', 'v_sqrt_f32', 'v_sin_f32', 'v_cos_f32')
def split_ops(s):
    ops, depth, cur = [], 0, ''
    for ch in s:
        if ch == '[': depth += 1
        if ch == ']': depth -= 1
        if ch == ',' and depth == 0: ops.append(cur); cur = ''
        else: cur += ch
    ops.append(cur)
    return [o.strip() for o in ops]

class Ins:
    def __init__(self, text):
        self.text = text
        t = text.split(';')[0].strip()
        parts = t.split(None, 1)
        self.op = op = parts[0]
        base = re.sub(r'_(e32|e64|dpp|sdwa)$', '', op)
        self.base = base
        rest = parts[1] if len(parts) > 1 else ''
        ops = split_ops(rest) if rest else []
        clean = []
        for o in ops:
            o2 = re.sub(r'\b(op_sel|op_sel_hi|neg_lo|neg_hi|quad_perm):\[[^\]]*\]', '', o)
            clean.append(o2)
        self.kind = 'other'; self.w = []; self.r = []; self.passes = 0
        self.dpp = ('quad_perm' in t or 'row_' in t or op.endswith('_dpp'))
        self.A = self.B = self.C = []
        R = [regs_of(o) for o in clean]
        allr = lambda L: [x for l in L for x in l]
        if op.startswith('v_mfma'):
            self.kind = 'mfma'
            self.w = R[0]; self.A, self.B, self.C = R[1], R[2], R[3]; self.r = R[1] + R[2] + R[3]
            self.sgemm = op.endswith('_f32') and ('x4_f32' in op or 'x2_f32' in op)
            if '16x16x32' in op or '16x16x16' in op: self.passes = 4
            elif '32x32x16' in op or '32x32x8' in op: self.passes = 8
            elif '16x16x4_f32' in op: self.passes = 8
            elif '32x32x2_f32' in op: self.passes = 16
            else: raise ValueError(op)
        elif op.startswith('v_'):
            self.kind = 'valu'
            if base.startswith('v_cmp'):
                self.w = R[0]; self.r = allr(R[1:])
                if base.startswith('v_cmpx'): self.w = self.w + [('s', 126), ('s', 127)]
            elif base in ('v_swap_b32', 'v_permlane32_swap_b32', 'v_permlane16_swap_b32'):
                self.w = R[0] + R[1]; self.r = R[0] + R[1]
            elif base in ('v_add_co_u32', 'v_addc_co_u32', 'v_sub_co_u32'):
                self.w = R[0] + R[1]; self.r = allr(R[2:])
            elif base == 'v_nop':
                pass
            else:
                self.w = R[0]; self.r = allr(R[1:])
                if base in ('v_fmac_f32', 'v_dot2c_f32_bf16', 'v_pk_fmac_f16', 'v_writelane_b32') or self.dpp: self.r = self.r + R[0]
            self.trans = base in TRANS
            self.dot = base.startswith('v_dot')
        elif op.startswith(('buffer_', 'global_')):
            self.kind = 'vmem'
            lds = re.search(r'\blds\b', t) is not None or op.startswith('global_load_lds')
            self.ldsdma = lds
            if '_load' in op and not lds:
                self.w = R[0]; self.r = allr(R[1:])
                if 'd16' in op: self.r = self.r + R[0]
            elif 'atomic' in op and re.search(r'\bsc0\b', t):
                self.w = R[0]; self.r = allr(R)
            else:
                self.r = allr(R)
            self.widestore = None
            if 'store_dwordx4' in op or 'store_dwordx3' in op:
                self.widestore = R[0] if op.startswith('buffer') else R[1]
        elif op.startswith('ds_'):
            self.kind = 'ds'
            if op.startswith(('ds_read', 'ds_bpermute', 'ds_permute', 'ds_swizzle')): self.w = R[0]; self.r = allr(R[1:])
            else: self.r = allr(R)
        elif op.startswith('s_'):
            self.kind = 'salu'
            if op in ('s_nop', 's_waitcnt', 's_barrier', 's_endpgm', 's_sleep', 's_setprio') or op.startswith(('s_cbranch', 's_branch')):
                pass
            elif op.startswith('s_cmp'):
                self.r = allr(R)
            else:
                self.w = R[0] if R else []; self.r = allr(R[1:])
                if 'saveexec' in op: self.w = self.w + [('s', 126), ('s', 127)]
        self.ws = set(self.w); self.rs = set(self.r)
        self.states = 1
        if op == 's_nop': self.states = int(rest, 0) + 1
        self.isbranch = op.startswith(('s_cbranch', 's_branch', 's_setpc', 's_swappc'))

def need(p, c):
    n = 0
    vw = {x for x in p.ws if x[0] != 's'}; sw = {x for x in p.ws if x[0] == 's'}
    if p.kind == 'valu':
        if c.kind == 'mfma' and vw & c.rs: n = max(n, 2)
        if c.kind == 'valu':
            if p.trans and (vw & c.rs): n = max(n, 1)
            if (c.dpp or c.base.startswith('v_permlane')) and (vw & c.rs): n = max(n, 2)
            if c.base in ('v_readlane_b32', 'v_readfirstlane_b32') and (vw & c.rs): n = max(n, 1)
            if sw & c.rs: n = max(n, 4 if c.base in ('v_readlane_b32', 'v_writelane_b32') else 2)
            if ('s', 126) in sw: n = max(n, 5 if c.dpp else 4)
        if p.dot and c.kind in ('valu', 'mfma', 'vmem', 'ds') and (vw & (c.rs | c.ws)):
            same = c.kind == 'valu' and c.base == p.base
            if same:
                ops = split_ops(c.text.split(';')[0].strip().split(None, 1)[1])
                ab = set(regs_of(ops[1]) + regs_of(ops[2]))
                if vw & ab: n = max(n, 3)
            else: n = max(n, 3)
        if c.kind == 'vmem' and (sw & c.rs): n = max(n, 5)
        if c.kind == 'mfma' and ('s', 126) in sw: n = max(n, 4)
        if c.kind == 'salu' and (sw & c.rs): n = max(n, 1)
        if c.isbranch and 'vcc' in c.op and (('s', 106) in sw): n = max(n, 1)
    elif p.kind == 'mfma':
        P = p.passes
        if c.kind == 'mfma':
            if p.ws & (set(c.A) | set(c.B)): n = max(n, P + 2 if p.sgemm else P + 4)
            if p.ws & set(c.C):
                exact = (p.w == c.C and p.passes == c.passes and p.sgemm == c.sgemm)
                if not exact:
                    if p.sgemm: n = max(n, P if c.sgemm else 0)
                    else: n = max(n, P + 2)
            elif p.ws & c.ws: n = max(n, P + 4)
        elif c.kind in ('valu', 'vmem', 'ds'):
            if p.ws & (c.rs | c.ws): n = max(n, P + 2 if p.sgemm else P + 4)
            if c.kind == 'valu' and not p.sgemm and (set(p.C) & c.ws): n = max(n, P - 1)
    elif p.kind == 'vmem':
        if p.widestore and (set(p.widestore) & c.ws): n = max(n, 2)
    elif p.kind == 'salu':
        if ('s', 124) in sw and c.kind == 'vmem' and c.ldsdma: n = max(n, 1)
    return n

def maxneed(p):
    if p.kind == 'mfma': return p.passes + 4
    if p.kind == 'valu':
        if any(x[0] == 's' for x in p.ws): return 5
        return 3 if p.dot else 2
    if p.kind == 'vmem' and p.widestore: return 2
    if p.kind == 'salu' and ('s', 124) in p.ws: return 1
    return 0

class Asm:
    def __init__(self):
        self.out = []; self.hist = []; self.nops = 0
        self.nvm = 0; self.nlg = 0
    def vtag(self): return self.nvm
    def ltag(self): return self.nlg
    def vwait(self, tag): self(f's_waitcnt vmcnt({min(63, self.nvm - tag)})')
    def lwait(self, tag): self(f's_waitcnt lgkmcnt({min(15, self.nlg - tag)})')
    def raw(self, s): self.out.append(s)
    def _pad(self, k):
        while k > 0:
            n = min(k, 16)
            i = Ins(f's_nop {n-1}'); self.out.append(f'  s_nop {n-1}'); self.hist.append(i); k -= n; self.nops += n
    def flush(self):
        d = 0; k = 0
        for p in reversed(self.hist[-24:]):
            k = max(k, maxneed(p) - d); d += p.states
        self._pad(k)
    def label(self, name, flush=True):
        if flush: self.flush()
        self.out.append(f'{name}:')
    def __call__(self, text, flush=None):
        for line in text.split('\n'):
            line = line.strip()
            if not line or line.startswith(';'): continue
            if line.endswith(':'): self.label(line[:-1]); continue
            if line.startswith('.'): self.out.append(line); continue
            c = Ins(line)
            if c.isbranch and flush is not False:
                d = 1; k = 0
                for p in reversed(self.hist[-24:]):
                    k = max(k, maxneed(p) - d); d += p.states
                self._pad(k)
            d = 0; k = 0
            for p in reversed(self.hist[-24:]):
                k = max(k, need(p, c) - d); d += p.states
                if d > 24: break
            self._pad(k)
            self.out.append('  ' + line); self.hist.append(c)
            if c.kind == 'vmem': self.nvm += 1
            if c.kind == 'ds': self.nlg += 1
    def text(self): return '\n'.join(self.out) + '\n'

def vr(b, n=None, k='v'):
    return f'{k}{b}' if n is None or n == 1 else f'{k}[{b}:{b+n-1}]'
def kdesc(name, vgpr, sgpr, accum):
    return f'''.p2align 6
.amdhsa_kernel {name}
  .amdhsa_next_free_vgpr {vgpr}
  .amdhsa_next_free_sgpr {sgpr}
  .amdhsa_accum_offset {accum}
  .amdhsa_group_segment_fixed_size 0
  .amdhsa_kernarg_size 88
  .amdhsa_user_sgpr_count 2
  .amdhsa_user_sgpr_kernarg_segment_ptr 1
  .amdhsa_system_sgpr_workgroup_id_x 1
.end_amdhsa_kernel
'''
```

```python
import math, struct
from asmlib import *
from layout import *

def fl(x): return '0x%08x' % struct.unpack('<I', struct.pack('<f', x))[0]
MF = 'v_mfma_f32_16x16x32_bf16'

def srd(a, d, lo, hi, size):
    a(f's_mov_b32 s{d}, s{lo}\ns_mov_b32 s{d+1}, s{hi}\ns_mov_b32 s{d+2}, {size}\ns_mov_b32 s{d+3}, 0x20000')

def code_prefetch(a, tag, start, nbytes, vtmp, vdst, neg=False):
    a(f's_getpc_b64 s[44:45]')
    a.label(f'{tag}_pc', flush=False)
    a(f's_add_u32 s44, s44, {start}-{tag}_pc\ns_addc_u32 s45, s45, {-1 if neg else 0}')
    a(f'v_lshlrev_b32 v{vtmp}, 6, v0')
    for i in range((nbytes + 16383)//16384):
        a(f'global_load_dword v{vdst}, v{vtmp}, s[44:45]')
        if (i+1)*16384 < nbytes: a(f'v_add_u32 v{vtmp}, 16384, v{vtmp}')

N_WP, N_X, N_WT, N_WO, N_QF, N_FILL = 88, 256, 128, 44, 32, 16
B_X = N_WP; B_WT = B_X + N_X; B_WO = B_WT + N_WT; B_QF = B_WO + N_WO; B_FILL = B_QF + N_QF; G1 = B_FILL + N_FILL

def gen_k1(a, pf_list):
    K = 'k1_kernel'
    a.raw(f'.globl {K}\n.p2align 8\n.type {K},@function\n{K}:')
    a(f's_cmp_ge_u32 s2, {G1}\ns_cbranch_scc1 k1_done')
    a('s_load_dwordx16 s[16:31], s[0:1], 0\ns_load_dwordx2 s[32:33], s[0:1], 80')
    for tag, start, nb, neg in pf_list: code_prefetch(a, tag, start, nb, 4, 168, neg)
    a('''v_and_b32 v1, 63, v0
    v_and_b32 v2, 15, v0
    v_bfe_u32 v3, v0, 4, 2
    v_lshrrev_b32 v4, 6, v0
    v_readfirstlane_b32 s34, v4''')
    a(f's_cmp_ge_u32 s2, {B_WT}\ns_cbranch_scc1 k1_misc')
    T1, TC, TS, T3, T4, AF, AC = 16, 32, 40, 48, 52, 56, 72
    a(f'''v_cvt_f32_u32 v6, v2
    v_lshlrev_b32 v7, 2, v3
    v_cvt_f32_u32 v7, v7
    v_mul_f32 v8, {fl(1/32)}, v6
    v_mul_f32 v9, v7, v8''')
    for h in range(4):
        for j in range(2):
            e = 2*h + j; ce = 16*(e >> 2) + (e & 3)
            a(f'v_fmamk_f32 v{10+j}, v8, {fl(ce)}, v9')
        a('v_cos_f32 v12, v10\nv_cos_f32 v13, v11\nv_sin_f32 v14, v10\nv_sin_f32 v15, v11')
        a(f'v_cvt_pk_bf16_f32 v{T1+h}, v12, v13\nv_cvt_pk_bf16_f32 v{T1+8+h}, -v14, -v15')
        a(f'v_xor_b32 v{T1+4+h}, 0x80000000, v{T1+h}\nv_xor_b32 v{T1+12+h}, 0x80000000, v{T1+8+h}')
    a('s_waitcnt lgkmcnt(0)')
    srd(a, 8, 32, 33, 0x10000000)
    a(f's_cmp_lt_u32 s2, {N_WP}\ns_cbranch_scc1 k1_wp_ld')
    srd(a, 12, 16, 17, 2048*1024)
    a(f'''s_sub_u32 s35, s2, {B_X}
    s_and_b32 s36, s35, 31
    s_lshr_b32 s37, s35, 5
    s_lshl_b32 s38, s37, 3
    s_lshl_b32 s39, s34, 1
    s_add_u32 s38, s38, s39
    s_lshl_b32 s38, s38, 5
    s_add_u32 s38, s38, s36
    s_lshl_b32 s39, s38, 10
    s_lshl_b32 s40, s34, 11
    v_lshlrev_b32 v4, 4, v1
    s_mov_b32 m0, s40
    s_add_u32 s41, s39, 32768
    buffer_load_dwordx4 v4, s[12:15], s39 offen lds
    s_add_u32 s40, s40, 1024
    s_mov_b32 m0, s40
    s_nop 0
    buffer_load_dwordx4 v4, s[12:15], s41 offen lds
    s_branch k1_tabs''')
    a.label('k1_wp_ld')
    srd(a, 12, 24, 25, 512*2752)
    a(f'''s_and_b32 s35, s2, 7
    s_mul_i32 s35, s35, 11
    s_lshr_b32 s36, s2, 3
    s_add_u32 s35, s35, s36
    s_cmp_ge_u32 s35, 86
    s_cbranch_scc1 k1_done''')
    a(f'''v_lshrrev_b32 v4, 1, v1
    v_lshrrev_b32 v5, 5, v1
    v_bfe_u32 v10, v1, 4, 1
    v_xor_b32 v10, v10, v1
    v_and_b32 v10, 1, v10
    v_lshlrev_b32 v10, 4, v10
    s_movk_i32 s36, 2752
    v_xor_b32 v11, v4, v5
    v_mul_lo_u32 v12, v11, s36
    v_add_u32 v12, v12, v10
    v_xor_b32 v11, 2, v11
    v_mul_lo_u32 v13, v11, s36
    v_add_u32 v13, v13, v10
    s_mul_i32 s37, s34, {128*2752}
    s_lshl_b32 s38, s35, 5
    s_add_u32 s37, s37, s38
    s_lshl_b32 s40, s34, 12''')
    for p in range(4):
        a(f's_mov_b32 m0, s40\ns_add_u32 s40, s40, 1024\nbuffer_load_dwordx4 v{12+(p&1)}, s[12:15], s37 offen lds\ns_add_u32 s37, s37, {32*2752}')
    a.label('k1_tabs')
    for nt in range(2):
        if nt == 0: a(f'v_mul_f32 v8, {fl(1/512)}, v6')
        else: a(f'v_add_f32 v8, {fl(16/512)}, v8')
        a('v_mul_f32 v9, v7, v8')
        for i in range(4):
            if i: a(f'v_add_f32 v9, v9, v8')
            a(f'v_cos_f32 v{TC+4*nt+i}, v9\nv_sin_f32 v{TS+4*nt+i}, v9')
    a(f'''v_lshrrev_b32 v8, 1, v2
    v_cvt_f32_u32 v8, v8
    v_mul_f32 v8, {fl(1/16)}, v8
    v_and_b32 v9, 1, v2
    v_cvt_f32_u32 v9, v9
    v_mul_f32 v9, {fl(0.25)}, v9
    v_fmac_f32 v9, v7, v8''')
    for h in range(2):
        a('v_add_f32 v10, v9, v8')
        a('v_cos_f32 v12, v9\nv_cos_f32 v13, v10\nv_sin_f32 v14, v9\nv_sin_f32 v15, v10')
        a(f'v_cvt_pk_bf16_f32 v{T3+h}, v12, v13\nv_cvt_pk_bf16_f32 v{T3+2+h}, v14, v15')
        if h == 0: a('v_add_f32 v9, v10, v8')
    a(f'v_mov_b32 v{T4}, 0xbf803f80\nv_mov_b32 v{T4+1}, 0xbf803f80\nv_mov_b32 v{T4+2}, 0\nv_mov_b32 v{T4+3}, 0')
    a('s_mov_b64 s[46:47], 1')
    a(f's_cmp_lt_u32 s2, {N_WP}\ns_cbranch_scc1 k1_wp')
    TW, PK, A2, NY = 104, 120, 136, 152
    a(f'''v_lshlrev_b32 v4, 3, v1
    s_lshl_b32 s40, s34, 11
    v_add_u32 v4, s40, v4
    v_mov_b32 v5, 0x3f803f80
    v_cmp_eq_u32 s[48:49], 0, v2
    s_waitcnt vmcnt(0)''')
    for R in range(2):
        a(f'ds_read_b64_tr_b16 v[{AF+4*R}:{AF+4*R+1}], v4 offset:{1024*R}\nds_read_b64_tr_b16 v[{AF+4*R+2}:{AF+4*R+3}], v4 offset:{1024*R+512}')
    a('s_waitcnt lgkmcnt(0)')
    for R in range(2):
        for tl in range(4):
            a(f'{MF} v[{AC+16*R+4*tl}:{AC+16*R+4*tl+3}], v[{AF+4*R}:{AF+4*R+3}], v[{T1+4*tl}:{T1+4*tl+3}], 0')
            r = AF + 4*R + tl
            a(f'v_dot2_f32_bf16 v{10+R}, v{r}, v5, {"0" if tl == 0 else f"v{10+R}"}')
            a(f'v_dot2_f32_bf16 v{12+R}, v{r}, v{r}, {"0" if tl == 0 else f"v{12+R}"}')
    a('''v_permlane32_swap_b32 v10, v12
    v_permlane32_swap_b32 v11, v13
    v_add_f32 v10, v10, v12
    v_add_f32 v11, v11, v13
    v_permlane16_swap_b32 v10, v11
    v_add_f32 v10, v10, v11''')
    for s in (8, 4, 2, 1): a(f'v_add_f32_dpp v10, v10, v10 row_ror:{s} row_mask:0xf bank_mask:0xf')
    a(f'''v_mul_f32 v10, {fl(1/512)}, v10
    v_mov_b32 v11, v10
    v_permlane32_swap_b32 v10, v11''')
    a(f'''v_readlane_b32 s50, v10, 0
    v_readlane_b32 s51, v10, 16
    v_fma_f32 v11, -v10, v10, v11
    v_max_f32 v11, 0, v11
    v_add_f32 v11, {fl(1e-5)}, v11
    v_rsq_f32 v12, v11
    v_sqrt_f32 v13, v11
    v_mov_b32 v14, {fl(-32.0)}
    v_cndmask_b32 v14, 0, v14, s[48:49]
    v_mul_f32 v12, {fl(1/16)}, v12''')
    for R in range(2):
        for i in range(4): a(f'v_fmac_f32 v{AC+16*R+i}, s{50+R}, v14')
    a('v_readlane_b32 s52, v12, 0\nv_readlane_b32 s54, v12, 16')
    for R in range(2):
        for nt in range(2):
            re, im = AC+16*R+4*nt, AC+16*R+8+4*nt
            t = TW + 8*nt
            for h in (0, 2):
                c, s = TC+4*nt+h, TS+4*nt+h
                a(f'v_pk_mul_f32 v[{t+h}:{t+h+1}], v[{re+h}:{re+h+1}], v[{c}:{c+1}]')
                a(f'v_pk_mul_f32 v[{t+4+h}:{t+5+h}], v[{im+h}:{im+h+1}], v[{c}:{c+1}]')
                a(f'v_pk_fma_f32 v[{t+h}:{t+h+1}], v[{im+h}:{im+h+1}], v[{s}:{s+1}], v[{t+h}:{t+h+1}]')
                a(f'v_pk_fma_f32 v[{t+4+h}:{t+5+h}], v[{re+h}:{re+h+1}], v[{s}:{s+1}], v[{t+4+h}:{t+5+h}] neg_lo:[1,0,0] neg_hi:[1,0,0]')
            p = PK + 8*R + 4*nt
            for h in range(4): a(f'v_cvt_pk_bf16_f32 v{p+h}, v{t+2*h}, v{t+2*h+1}')
        for nt in range(2):
            p = PK + 8*R + 4*nt
            a(f'{MF} v[{A2+8*R+4*nt}:{A2+8*R+4*nt+3}], v[{T3}:{T3+3}], v[{p}:{p+3}], 0')
        a(f'{MF} v[{NY+4*R}:{NY+4*R+3}], v[{T4}:{T4+3}], v[{PK+8*R}:{PK+8*R+3}], 0')
    a(f'''s_bfe_u32 s41, s36, 0x10002
    s_lshl_b32 s41, s41, 4
    s_lshr_b32 s42, s36, 3
    s_lshl_b32 s42, s42, 2
    s_add_u32 s41, s41, s42
    s_and_b32 s42, s36, 3
    s_add_u32 s41, s41, s42
    s_sub_u32 s42, s38, s36
    s_add_u32 s41, s41, s42
    s_lshl_b32 s41, s41, 2
    s_add_u32 s41, s41, {SIG}
    s_lshl_b32 s42, s38, 2
    s_add_u32 s42, s42, {MX}
    v_lshlrev_b32 v15, 3, v1
    s_mov_b64 exec, 0x10001
    buffer_store_dword v13, v15, s[8:11], s41 offen
    buffer_store_dword v10, v15, s[8:11], s42 offen
    s_mov_b64 exec, -1''')
    a(f'''v_lshlrev_b32 v4, 6, v3
    v_add_u32 v4, v4, v2
    v_lshlrev_b32 v4, 5, v4
    s_lshl_b32 s40, s34, 3
    s_add_u32 s40, s40, 8192
    v_add_u32 v4, s40, v4''')
    for R in range(2):
        a(f'v_mul_f32 v{NY+4*R}, {fl(math.sqrt(0.5))}, v{NY+4*R}')
        a(f'v_cndmask_b32 v{A2+8*R}, v{A2+8*R}, v{NY+4*R}, s[46:47]')
        a(f'v_cndmask_b32 v{A2+8*R+1}, v{A2+8*R+1}, 0, s[46:47]')
        for k in range(4):
            r = A2 + 8*R + 2*k
            a(f'v_pk_mul_f32 v[{r}:{r+1}], v[{r}:{r+1}], s[{52+2*R}:{53+2*R}] op_sel_hi:[1,0]')
        for k in range(4):
            r = A2 + 8*R + 2*k
            a(f'v_cvt_pk_bf16_f32 v{TW+2*k+R}, v{r}, v{r+1}')
    for k in range(4):
        nt, h = k >> 1, k & 1
        a(f'ds_write_b64 v4, v[{TW+2*k}:{TW+2*k+1}] offset:{(16*nt+32*h)*32}')
    a(f'''v_lshlrev_b32 v5, 4, v0
    v_lshrrev_b32 v6, 1, v0
    v_lshlrev_b32 v6, 13, v6
    v_and_b32 v7, 1, v0
    v_lshl_add_u32 v6, v7, 4, v6
    s_lshl_b32 s41, s36, 8
    s_lshl_b32 s42, s37, 5
    s_add_u32 s41, s41, s42
    s_add_u32 s41, s41, {UH}
    s_add_u32 s42, s41, {128*8192}
    s_waitcnt lgkmcnt(0)
    s_barrier
    ds_read_b128 v[16:19], v5 offset:8192
    ds_read_b128 v[20:23], v5 offset:12288
    s_waitcnt lgkmcnt(1)
    buffer_store_dwordx4 v[16:19], v6, s[8:11], s41 offen
    s_waitcnt lgkmcnt(0)
    buffer_store_dwordx4 v[20:23], v6, s[8:11], s42 offen
    s_endpgm''')
    a.label('k1_wp')
    a(f'''v_bfe_u32 v4, v1, 2, 2
    v_and_b32 v5, 3, v1
    v_lshrrev_b32 v8, 2, v1
    v_lshlrev_b32 v8, 4, v8
    v_lshl_add_u32 v8, v5, 2, v8
    v_add_u32 v8, v8, v4
    v_lshlrev_b32 v8, 5, v8
    v_lshrrev_b32 v5, 1, v5
    s_lshr_b32 s40, s34, 1
    v_xor_b32 v5, s40, v5
    v_lshl_add_u32 v8, v5, 4, v8
    s_and_b32 s40, s34, 1
    s_lshl_b32 s40, s40, 3
    v_add_u32 v8, s40, v8
    v_xor_b32 v9, 32, v8
    v_xor_b32 v10, 64, v8
    v_xor_b32 v11, 96, v8
    s_waitcnt vmcnt(0)
    s_barrier''')
    for db in range(4):
        a(f'ds_read_b64_tr_b16 v[{AF+4*db}:{AF+4*db+1}], v{8+db}\nds_read_b64_tr_b16 v[{AF+4*db+2}:{AF+4*db+3}], v{8+db} offset:8192')
    for db in range(4):
        a(f's_waitcnt lgkmcnt({6-2*db})')
        for tl in range(4):
            a(f'{MF} v[{AC+16*db+4*tl}:{AC+16*db+4*tl+3}], v[{AF+4*db}:{AF+4*db+3}], v[{T1+4*tl}:{T1+4*tl+3}], 0')
    a(f'''v_lshlrev_b32 v4, 12, v3
    v_bfe_u32 v5, v2, 1, 2
    v_lshl_add_u32 v4, v5, 8, v4
    v_lshrrev_b32 v5, 3, v2
    v_lshl_add_u32 v4, v5, 3, v4
    v_and_b32 v5, 1, v2
    v_lshl_add_u32 v4, v5, 2, v4
    s_lshl_b32 s40, s34, 6
    s_add_u32 s40, s40, 16384
    v_add_u32 v4, s40, v4
    s_mov_b32 s52, {fl(1/16)}''')
    TW2 = 136
    o2 = lambda nt, f: AC + 16*f + 4*nt
    ny = lambda f: AC + 16*f + 8
    for nt in range(2):
        for db in range(4):
            re, im = AC+16*db+4*nt, AC+16*db+8+4*nt
            t = TW2 + 8*db
            c, s = TC+4*nt+db, TS+4*nt+db
            cb, sb = c & ~1, s & ~1
            sel2 = 'op_sel:[0,1] op_sel_hi:[1,1]' if db & 1 else 'op_sel_hi:[1,0]'
            sel3 = 'op_sel:[0,1,0] op_sel_hi:[1,1,1]' if db & 1 else 'op_sel_hi:[1,0,1]'
            for h in (0, 2):
                a(f'v_pk_mul_f32 v[{t+h}:{t+h+1}], v[{re+h}:{re+h+1}], v[{cb}:{cb+1}] {sel2}')
                a(f'v_pk_mul_f32 v[{t+4+h}:{t+5+h}], v[{im+h}:{im+h+1}], v[{cb}:{cb+1}] {sel2}')
                a(f'v_pk_fma_f32 v[{t+h}:{t+h+1}], v[{im+h}:{im+h+1}], v[{sb}:{sb+1}], v[{t+h}:{t+h+1}] {sel3}')
                a(f'v_pk_fma_f32 v[{t+4+h}:{t+5+h}], v[{re+h}:{re+h+1}], v[{sb}:{sb+1}], v[{t+4+h}:{t+5+h}] {sel3} neg_lo:[1,0,0] neg_hi:[1,0,0]')
        for f in range(4):
            p = AF + 4*f
            a(f'v_cvt_pk_bf16_f32 v{p}, v{TW2+f}, v{TW2+8+f}\nv_cvt_pk_bf16_f32 v{p+1}, v{TW2+16+f}, v{TW2+24+f}')
            a(f'v_cvt_pk_bf16_f32 v{p+2}, v{TW2+4+f}, v{TW2+12+f}\nv_cvt_pk_bf16_f32 v{p+3}, v{TW2+20+f}, v{TW2+28+f}')
        for f in range(4):
            p = AF + 4*f
            a(f'{MF} v[{o2(nt,f)}:{o2(nt,f)+3}], v[{T3}:{T3+3}], v[{p}:{p+3}], 0')
            if nt == 0: a(f'{MF} v[{ny(f)}:{ny(f)+3}], v[{T4}:{T4+3}], v[{p}:{p+3}], 0')
    for f in range(4):
        a(f'v_mul_f32 v{ny(f)}, {fl(math.sqrt(0.5))}, v{ny(f)}')
        a(f'v_cndmask_b32 v{o2(0,f)}, v{o2(0,f)}, v{ny(f)}, s[46:47]')
    for nt in range(2):
        for f in range(4):
            for h in range(2):
                r = o2(nt,f) + 2*h
                a(f'v_pk_mul_f32 v[{r}:{r+1}], v[{r}:{r+1}], s[52:53] op_sel_hi:[1,0]')
                a(f'v_cvt_pk_bf16_f32 v{r}, v{r}, v{r+1}')
                a(f'ds_write_b32 v4, v{r} offset:{(nt+2*h)*1024 + 16*f}')
    a(f'''v_lshlrev_b32 v5, 4, v0
    s_lshl_b32 s41, s35, 14
    s_add_u32 s42, s41, {W1}
    s_add_u32 s41, s41, {W2 - WPB}
    s_cmp_lt_u32 s35, 43
    s_cselect_b32 s41, s42, s41
    s_waitcnt lgkmcnt(0)
    s_barrier''')
    for p in range(4): a(f'ds_read_b128 v[{16+4*p}:{19+4*p}], v5 offset:{16384+4096*p}')
    for p in range(4):
        a(f's_waitcnt lgkmcnt({3-p})\nbuffer_store_dwordx4 v[{16+4*p}:{19+4*p}], v5, s[8:11], s41 offen\ns_add_u32 s41, s41, 4096')
    a('s_endpgm')
    a.label('k1_misc')
    a('s_waitcnt lgkmcnt(0)')
    srd(a, 8, 32, 33, 0x10000000)
    a(f's_cmp_ge_u32 s2, {B_WO}\ns_cbranch_scc1 k1_wo')
    srd(a, 12, 18, 19, 2048*514); srd(a, 36, 20, 21, 2048*514)
    a(f'''s_sub_u32 s35, s2, {B_WT}
    s_and_b32 s40, s35, 63
    s_lshr_b32 s41, s35, 6
    v_lshlrev_b32 v4, 1, v0
    v_mov_b32 v5, 512
    v_cmp_eq_u32 vcc, 0, v0
    v_cndmask_b32 v4, v4, v5, vcc
    s_mul_i32 s42, s40, 514
    s_mul_i32 s43, s41, {4*64*514}
    s_add_u32 s42, s42, s43''')
    for k in range(16):
        j2 = pi32(k)
        a(f's_add_u32 s43, s42, {j2*64*514}\nbuffer_load_ushort v{16+k}, v4, s[12:15], s43 offen\nbuffer_load_ushort v{32+k}, v4, s[36:39], s43 offen')
    a(f'''v_lshlrev_b32 v5, 13, v0
    s_lshl_b32 s42, s40, 7
    s_lshl_b32 s43, s41, 6
    s_add_u32 s42, s42, s43
    s_add_u32 s42, s42, {WT}''')
    for q in range(4):
        a(f's_waitcnt vmcnt({24-7*q})')
        for k in range(4*q, 4*q+4): a(f'v_lshl_or_b32 v{16+k}, v{32+k}, 16, v{16+k}')
        a(f'buffer_store_dwordx4 v[{16+4*q}:{19+4*q}], v5, s[8:11], s42 offen offset:{16*q}')
    a('s_endpgm')
    a.label('k1_wo')
    a(f's_cmp_ge_u32 s2, {B_QF}\ns_cbranch_scc1 k1_qf')
    srd(a, 12, 30, 31, 688*1024)
    a(f'''s_sub_u32 s35, s2, {B_WO}
    s_lshr_b32 s40, s35, 1
    s_and_b32 s41, s35, 1
    s_lshl_b32 s42, s40, 15
    s_lshl_b32 s43, s41, 9
    s_add_u32 s42, s42, s43
    v_lshlrev_b32 v4, 1, v0
    v_add_u32 v4, s42, v4''')
    for g in range(4):
        for e in range(8):
            f = 16*(e >> 2) + 4*g + (e & 3)
            a(f's_movk_i32 s43, {f*1024}\nbuffer_load_ushort v{16+8*g+e}, v4, s[12:15], s43 offen')
    a(f'''v_bfe_u32 v5, v0, 2, 2
    s_lshl_b32 s42, s41, 2
    s_add_u32 s42, s42, s34
    s_mul_i32 s42, s42, {4*22*1024}
    s_lshl_b32 s43, s40, 10
    s_add_u32 s42, s42, s43
    s_add_u32 s42, s42, {WO}
    v_mul_u32_u24 v5, {22*1024}, v5
    v_lshl_add_u32 v5, v3, 6, v5
    v_and_b32 v6, 3, v0
    v_lshl_add_u32 v5, v6, 4, v5''')
    for g in range(4):
        a(f's_waitcnt vmcnt({24-7*g})')
        for h in range(4): a(f'v_lshl_or_b32 v{48+4*g+h}, v{16+8*g+2*h+1}, 16, v{16+8*g+2*h}')
        a(f'buffer_store_dwordx4 v[{48+4*g}:{51+4*g}], v5, s[8:11], s42 offen offset:{256*g}')
    a('s_endpgm')
    a.label('k1_qf')
    a(f's_cmp_ge_u32 s2, {B_FILL}\ns_cbranch_scc1 k1_fill')
    a(f'''s_sub_u32 s35, s2, {B_QF}
    s_lshr_b32 s40, s35, 2
    s_lshl_b32 s40, s40, 6
    s_and_b32 s41, s35, 3
    s_lshl_b32 s41, s41, 2
    s_add_u32 s40, s40, s41
    v_lshrrev_b32 v4, 2, v2
    v_lshlrev_b32 v4, 4, v4
    v_and_b32 v5, 3, v2
    v_add3_u32 v4, v4, v5, s40
    s_lshl_b32 s41, s34, 6
    v_lshl_add_u32 v5, v3, 1, s41
    v_lshlrev_b32 v6, 4, v1
    s_lshl_b32 s42, s35, 14
    s_lshl_b32 s43, s34, 12
    s_add_u32 s42, s42, s43
    s_add_u32 s42, s42, {QF}
    v_mov_b32 v13, {fl(1/16)}
    v_mov_b32 v14, 256
    v_mov_b32 v15, {fl(math.sqrt(1/512))}
    v_cmp_eq_u32 vcc, 0, v5''')
    for kk in range(4):
        for h in range(4):
            cc = 16*kk + 8*(h >> 1) + (h & 1)
            a(f'v_add_u32 v7, {cc}, v5')
            sc = 'v13'
            if cc == 0:
                a('v_cndmask_b32 v7, v7, v14, vcc\nv_cndmask_b32 v12, v13, v15, vcc'); sc = 'v12'
            a(f'''v_mul_u32_u24 v7, v7, v4
            v_and_b32 v7, 511, v7
            v_cvt_f32_u32 v7, v7
            v_mul_f32 v7, {fl(1/512)}, v7
            v_cos_f32 v8, v7
            v_sin_f32 v9, v7
            v_mul_f32 v8, v8, {sc}
            v_mul_f32 v9, v9, {sc}
            v_cvt_pk_bf16_f32 v{16+4*kk+h}, v8, -v9''')
        a(f'buffer_store_dwordx4 v[{16+4*kk}:{19+4*kk}], v6, s[8:11], s42 offen offset:{1024*kk}')
    a('s_endpgm')
    a.label('k1_fill')
    a(f'''s_sub_u32 s35, s2, {B_FILL}
    s_lshl_b32 s40, s35, 14
    s_add_u32 s41, s40, {ST}
    s_add_u32 s42, s40, {FL}
    v_lshlrev_b32 v4, 4, v0
    v_mov_b32 v16, -1
    v_mov_b32 v17, -1
    v_mov_b32 v18, -1
    v_mov_b32 v19, -1
    v_mov_b32 v20, 0
    v_mov_b32 v21, 0
    v_mov_b32 v22, 0
    v_mov_b32 v23, 0''')
    for p in range(4):
        a(f'buffer_store_dwordx4 v[16:19], v4, s[8:11], s41 offen\nbuffer_store_dwordx4 v[20:23], v4, s[8:11], s42 offen\ns_add_u32 s41, s41, 4096\ns_add_u32 s42, s42, 4096')
    a.label('k1_done')
    a('s_endpgm')
    return kdesc(K, 172, 64, 172), f'; @launch kernel={K} grid=({G1},1,1) block=(256,1,1) lds=32768'
```

```python
import math
from asmlib import *
from layout import *
from gen_k1 import fl, MF, srd, code_prefetch

def cmul(a, dre, dim, re, im, c, s, conj):
    for h in range(0, 8, 2):
        P = lambda b: f'v[{b+h}:{b+h+1}]'
        a(f'v_pk_mul_f32 {P(dre)}, {P(re)}, {P(c)}')
        a(f'v_pk_mul_f32 {P(dim)}, {P(im)}, {P(c)}')
    neg = ' neg_lo:[1,0,0] neg_hi:[1,0,0]'
    for h in range(0, 8, 2):
        P = lambda b: f'v[{b+h}:{b+h+1}]'
        a(f'v_pk_fma_f32 {P(dre)}, {P(im)}, {P(s)}, {P(dre)}' + ('' if conj else neg))
        a(f'v_pk_fma_f32 {P(dim)}, {P(re)}, {P(s)}, {P(dim)}' + (neg if conj else ''))

class R2:
    BRE, BIM = 16, 32
    FC, FS, FN = 48, 56, 64
    TAC, TAS, TBC, TBS = 72, 80, 88, 96
    SELR, SELI = 104, 108
    AF = 112
    WP = 144
    WR, WI = 152, 160
    SG = 168
    UR, UI = 176, 184
    XR, XI = 192, 200
    YR, YI = 208, 216
    PR, PI = 224, 228
    END = 232

def p2_lane_setup(a):
    a('''s_lshl_b32 s35, s34, 4
    v_add_u32 v6, s35, v2
    v_cvt_f32_u32 v6, v6
    v_lshlrev_b32 v7, 2, v3
    v_cvt_f32_u32 v7, v7
    v_and_b32 v8, 1, v3
    v_lshlrev_b32 v8, 4, v8
    v_lshrrev_b32 v4, 1, v3
    v_lshl_add_u32 v8, v4, 2, v8
    v_cvt_f32_u32 v8, v8
    v_bfe_u32 v5, v2, 2, 1
    v_lshlrev_b32 v5, 4, v5
    v_lshrrev_b32 v4, 3, v2
    v_lshl_add_u32 v5, v4, 2, v5
    v_and_b32 v4, 3, v2
    v_add_u32 v5, v5, v4
    v_cvt_f32_u32 v9, v5''')

def p2_tab14(a):
    R = R2
    a(f'v_mul_f32 v10, {fl(1/64)}, v6\nv_mul_f32 v11, v7, v10')
    for tau in range(4):
        a(f's_add_u32 s36, s34, {tau}\ns_and_b32 s36, s36, 3\ns_lshl_b32 s36, s36, 4\nv_cvt_f32_u32 v12, s36\nv_fma_f32 v12, v12, v10, v11')
        for i in range(4):
            if i: a('v_add_f32 v12, v12, v10')
            a(f'v_cos_f32 v13, v12\nv_sin_f32 v14, v12')
            a(f'v_cvt_pk_bf16_f32 v{R.BRE+4*tau+i}, v13, v14\nv_cvt_pk_bf16_f32 v{R.BIM+4*tau+i}, -v14, v13')
    a(f'v_lshlrev_b32 v4, 2, v3\nv_sub_u32 v4, v2, v4\nv_mov_b32 v13, 0x3f80')
    for i in range(4):
        a(f'v_cmp_eq_u32 vcc, {i}, v4\nv_cndmask_b32 v{R.SELR+i}, 0, v13, vcc\nv_lshlrev_b32 v{R.SELI+i}, 16, v{R.SELR+i}')

def p2_tabs_rest(a, hook=lambda: None):
    R = R2
    a(f'v_mul_f32 v10, {fl(1/2048)}, v6\nv_mul_f32 v11, v8, v10')
    for e in range(8):
        a(f'v_fmamk_f32 v12, v10, {fl(8*(e>>2)+(e&3))}, v11\nv_cos_f32 v{R.TAC+e}, v12\nv_sin_f32 v{R.TAS+e}, v12'); hook()
    for t in range(2):
        if t == 0: a(f'v_mul_f32 v10, {fl(1/32)}, v9')
        else: a(f'v_add_f32 v10, {fl(8/32)}, v10')
        a('v_mul_f32 v11, v8, v10')
        for h in range(4):
            for j in range(2):
                e = 2*h + j
                a(f'v_fmamk_f32 v{12+j}, v10, {fl(8*(e>>2)+(e&3))}, v11')
            a('v_cos_f32 v14, v12\nv_cos_f32 v15, v13\nv_sin_f32 v12, v12\nv_sin_f32 v13, v13')
            a(f'v_cvt_pk_bf16_f32 v{R.FC+4*t+h}, v14, v15\nv_cvt_pk_bf16_f32 v{R.FS+4*t+h}, v12, v13\nv_xor_b32 v{R.FN+4*t+h}, 0x80008000, v{R.FS+4*t+h}'); hook()
    a('v_cvt_f32_u32 v13, s35\nv_add_f32 v13, v13, v7')
    for t in range(2):
        if t == 0: a(f'v_mul_f32 v10, {fl(1/2048)}, v9')
        else: a(f'v_add_f32 v10, {fl(8/2048)}, v10')
        a('v_mul_f32 v12, v13, v10')
        for i in range(4):
            if i: a('v_add_f32 v12, v12, v10')
            a(f'v_cos_f32 v{R.TBC+4*t+i}, v12\nv_sin_f32 v{R.TBS+4*t+i}, v12'); hook()

def p2_loads(a, sc):
    R = R2; tags = []
    a(f'''v_lshlrev_b32 v4, 8, v5
    v_lshl_add_u32 v4, v3, 4, v4
    s_lshl_b32 s37, s{sc}, 13''')
    for tau in range(4):
        a(f's_add_u32 s36, s34, {tau}\ns_and_b32 s36, s36, 3\ns_lshl_b32 s36, s36, 6\ns_add_u32 s36, s36, s37')
        if UH: a(f's_add_u32 s36, s36, {UH}')
        for t in range(2):
            r = R.AF + 8*tau + 4*t
            a(f'buffer_load_dwordx4 v[{r}:{r+3}], v4, s[8:11], s36 offen offset:{2048*t}')
        tags.append(a.vtag())
    a(f'''v_lshlrev_b32 v4, 7, v2
    v_lshl_add_u32 v4, v3, 5, v4
    s_lshl_b32 s36, s34, 11
    s_add_u32 s38, s36, {SIG}
    s_add_u32 s36, s36, s37
    s_add_u32 s36, s36, {WT}
    buffer_load_dwordx4 v[{R.WP}:{R.WP+3}], v4, s[8:11], s36 offen
    buffer_load_dwordx4 v[{R.WP+4}:{R.WP+7}], v4, s[8:11], s36 offen offset:16
    buffer_load_dwordx4 v[{R.SG}:{R.SG+3}], v4, s[8:11], s38 offen
    buffer_load_dwordx4 v[{R.SG+4}:{R.SG+7}], v4, s[8:11], s38 offen offset:16''')
    tags += [a.vtag()-2, a.vtag()]
    return tags

def pack8(a, dst, src):
    for h in range(4): a(f'v_cvt_pk_bf16_f32 v{dst+h}, v{src+2*h}, v{src+2*h+1}')

def p2_compute(a, sc, ldsbase, tags, stflag='', hook=lambda k: None):
    R = R2
    q = lambda b: f'v[{b}:{b+3}]'
    for tau in range(4):
        a.vwait(tags[tau])
        for t in range(2):
            A = q(R.AF+8*tau+4*t)
            a(f'{MF} {q(R.XR+4*t)}, {A}, {q(R.BRE+4*tau)}, {"0" if tau==0 else q(R.XR+4*t)}')
            a(f'{MF} {q(R.XI+4*t)}, {A}, {q(R.BIM+4*tau)}, {"0" if tau==0 else q(R.XI+4*t)}')
    for t in range(2):
        a(f'{MF} {q(R.UR+4*t)}, {q(R.AF+4*t)}, {q(R.SELR)}, 0\n{MF} {q(R.UI+4*t)}, {q(R.AF+4*t)}, {q(R.SELI)}, 0')
    hook(0)
    a(f'''v_lshlrev_b32 v10, 4, v1
    s_lshl_b32 s36, s34, 11
    s_add_u32 s36, s36, {ldsbase}
    v_add_u32 v11, s36, v10''')
    cmul(a, R.YR, R.YI, R.XR, R.XI, R.TAC, R.TAS, True)
    pack8(a, R.PR, R.YR); pack8(a, R.PI, R.YI)
    for t in range(2):
        a(f'{MF} {q(R.XR+4*t)}, {q(R.FC+4*t)}, {q(R.PR)}, 0\n{MF} {q(R.XI+4*t)}, {q(R.FN+4*t)}, {q(R.PR)}, 0')
    for t in range(2):
        a(f'{MF} {q(R.XR+4*t)}, {q(R.FS+4*t)}, {q(R.PI)}, {q(R.XR+4*t)}\n{MF} {q(R.XI+4*t)}, {q(R.FC+4*t)}, {q(R.PI)}, {q(R.XI+4*t)}')
    hook(1); a.vwait(tags[4])
    for e in range(8):
        a(f'v_lshlrev_b32 v{R.WR+e}, 16, v{R.WP+e}\nv_and_b32 v{R.WI+e}, 0xffff0000, v{R.WP+e}')
    cmul(a, R.YR, R.YI, R.XR, R.XI, R.WR, R.WI, False)
    pack8(a, R.PR, R.YR); pack8(a, R.PI, R.YI)
    for t in range(2):
        a(f'{MF} {q(R.XR+4*t)}, {q(R.PR)}, {q(R.FC+4*t)}, 0\n{MF} {q(R.XI+4*t)}, {q(R.PR)}, {q(R.FS+4*t)}, 0')
    for t in range(2):
        a(f'{MF} {q(R.XR+4*t)}, {q(R.PI)}, {q(R.FN+4*t)}, {q(R.XR+4*t)}\n{MF} {q(R.XI+4*t)}, {q(R.PI)}, {q(R.FC+4*t)}, {q(R.XI+4*t)}')
    hook(2); a.vwait(tags[5])
    for h in range(0, 8, 2):
        a(f'v_pk_mul_f32 v[{R.UR+h}:{R.UR+h+1}], v[{R.UR+h}:{R.UR+h+1}], v[{R.SG+h}:{R.SG+h+1}]')
        a(f'v_pk_mul_f32 v[{R.UI+h}:{R.UI+h+1}], v[{R.UI+h}:{R.UI+h+1}], v[{R.SG+h}:{R.SG+h+1}]')
    cmul(a, R.YR, R.YI, R.XR, R.XI, R.TBC, R.TBS, False)
    for t in range(2):
        for i in range(4):
            a(f'v_cvt_pk_bf16_f32 v{R.AF+4*t+i}, v{R.YR+4*t+i}, -v{R.YI+4*t+i}')
        a(f'ds_write_b128 v11, {q(R.AF+4*t)} offset:{1024*t}')
    for tau in range(1, 4):
        a(f's_add_u32 s36, s34, {tau}\ns_and_b32 s36, s36, 3\ns_lshl_b32 s36, s36, 11\ns_add_u32 s36, s36, {ldsbase}\nv_add_u32 v{11+tau}, s36, v10')
    for t in range(2):
        A = q(R.AF+4*t)
        a(f'{MF} {q(R.XR+4*t)}, {A}, {q(R.BRE)}, 0\n{MF} {q(R.XI+4*t)}, {A}, {q(R.BIM)}, 0')
    a('s_waitcnt lgkmcnt(0)\ns_barrier')
    for tau in range(1, 4):
        for t in range(2): a(f'ds_read_b128 {q(R.AF+8*tau+4*t)}, v{11+tau} offset:{1024*t}')
    a(f'''v_lshlrev_b32 v4, 6, v2
    v_lshl_add_u32 v4, v3, 4, v4
    s_lshl_b32 s36, s34, 10
    s_lshl_b32 s37, s{sc}, 13
    s_add_u32 s36, s36, s37
    s_add_u32 s36, s36, {HT}
    s_add_u32 s37, s36, 4096
    s_mov_b32 s38, {fl(1/2048)}
    s_cmp_eq_u32 s{sc}, 0
    s_cselect_b32 s40, 0, {fl(-1/2048)}''')
    for tau in range(1, 4):
        for t in range(2):
            a(f's_waitcnt lgkmcnt({5-2*(tau-1)-t})')
            A = q(R.AF+8*tau+4*t)
            a(f'{MF} {q(R.XR+4*t)}, {A}, {q(R.BRE+4*tau)}, {q(R.XR+4*t)}\n{MF} {q(R.XI+4*t)}, {A}, {q(R.BIM+4*tau)}, {q(R.XI+4*t)}')
    for h in range(0, 8, 2):
        a(f'v_pk_fma_f32 v[{R.UR+h}:{R.UR+h+1}], v[{R.XR+h}:{R.XR+h+1}], s[38:39], v[{R.UR+h}:{R.UR+h+1}] op_sel_hi:[1,0,1]')
    pack8(a, R.PR, R.UR)
    a(f'buffer_store_dwordx4 {q(R.PR)}, v4, s[8:11], s36 offen{stflag}')
    for h in range(0, 8, 2):
        a(f'v_pk_fma_f32 v[{R.UI+h}:{R.UI+h+1}], v[{R.XI+h}:{R.XI+h+1}], s[40:41], v[{R.UI+h}:{R.UI+h+1}] op_sel_hi:[1,0,1]')
    pack8(a, R.PI, R.UI)
    a(f'buffer_store_dwordx4 {q(R.PI)}, v4, s[8:11], s37 offen{stflag}')

def gen_k2(a):
    K = 'k2_kernel'
    a.raw(f'.globl {K}\n.p2align 8\n.type {K},@function\n{K}:')
    a(f's_cmp_ge_u32 s2, 256\ns_cbranch_scc1 k2_done')
    a('s_load_dwordx2 s[32:33], s[0:1], 80')
    a('''v_and_b32 v1, 63, v0
    v_and_b32 v2, 15, v0
    v_bfe_u32 v3, v0, 4, 2
    v_lshrrev_b32 v4, 6, v0
    v_readfirstlane_b32 s34, v4''')
    p2_lane_setup(a)
    p2_tab14(a)
    a('s_waitcnt lgkmcnt(0)')
    srd(a, 8, 32, 33, 0x10000000)
    tags = p2_loads(a, 2)
    p2_tabs_rest(a)
    p2_compute(a, 2, 0, tags)
    a.label('k2_done')
    a('s_endpgm')
    return kdesc(K, R2.END, 64, R2.END), f'; @launch kernel={K} grid=(256,1,1) block=(256,1,1) lds=8192'
```

```python
import math
from asmlib import *
from layout import *
from gen_k1 import fl, MF, srd, code_prefetch
from gen_k2 import *

LX, LY = 0, 98304
FLH, FLZ, FLP = FL, FL + 65536, FL + 131072
MF32 = 'v_mfma_f32_16x16x4_f32'
q = lambda b, k='v': f'{k}[{b}:{b+3}]'
p2r = lambda b: f'v[{b}:{b+1}]'
LIMIT = 400000

def srd_off(a, d, off, size):
    a(f's_add_u32 s{d}, s32, {off}\ns_addc_u32 s{d+1}, s33, 0\ns_mov_b32 s{d+2}, {size}\ns_mov_b32 s{d+3}, 0x20000')

def gelu(a, regs, C1, C2, T):
    G = 4
    for b in range(0, len(regs), G):
        grp = regs[b:b+G]
        for k, r in enumerate(grp): a(f'v_pk_mul_f32 {p2r(T+2*k)}, {p2r(r)}, {p2r(r)}')
        for k, r in enumerate(grp): a(f'v_pk_fma_f32 {p2r(T+2*k)}, {p2r(T+2*k)}, {p2r(C2)}, {p2r(C1)}')
        for k, r in enumerate(grp): a(f'v_pk_mul_f32 {p2r(T+2*k)}, {p2r(T+2*k)}, {p2r(r)}')
        for k in range(2*len(grp)): a(f'v_exp_f32 v{T+k}, v{T+k}')
        for k, r in enumerate(grp): a(f'v_pk_add_f32 {p2r(T+2*k)}, {p2r(T+2*k)}, 1.0 op_sel_hi:[1,0]')
        for k in range(2*len(grp)): a(f'v_rcp_f32 v{T+k}, v{T+k}')
        for k, r in enumerate(grp): a(f'v_pk_mul_f32 {p2r(r)}, {p2r(r)}, {p2r(T+2*k)}')

def gen_km(a, stamp=False, cfg={}):
    K = 'km_kernel'
    ns = [0]
    def ST_(name):
        if stamp:
            a(f's_memrealtime s[{72+2*ns[0]}:{73+2*ns[0]}]'); ns[0] += 1; names.append(name)
    names = []
    def poll(tag, voff, soff):
        a(f's_mov_b32 s43, 0')
        a.label(f'{tag}_poll')
        a(f'''buffer_load_dword v15, v{voff}, s[8:11], s{soff} offen sc1
        s_add_u32 s43, s43, 1
        s_waitcnt vmcnt(0)
        v_cmp_eq_u32 vcc, 0, v15
        s_cmp_ge_u32 s43, {LIMIT}
        s_cbranch_scc1 {tag}_go
        s_cbranch_vccnz {tag}_poll''')
        a.label(f'{tag}_go')
    def flag(soff):
        a(f'''v_mov_b32 v14, 0
        v_mov_b32 v15, 1
        s_mov_b64 exec, 1
        buffer_store_dword v15, v14, s[8:11], s{soff} offen sc1
        s_mov_b64 exec, -1''')
    a.raw(f'.globl {K}\n.p2align 8\n.type {K},@function\n{K}:')
    ST_('entry')
    a(f's_cmp_ge_u32 s2, 256\ns_cbranch_scc1 km_done')
    a('s_load_dwordx2 s[32:33], s[0:1], 80\ns_load_dwordx4 s[64:67], s[0:1], 40\ns_load_dwordx2 s[68:69], s[0:1], 64')
    a('''v_and_b32 v1, 63, v0
    v_and_b32 v2, 15, v0
    v_bfe_u32 v3, v0, 4, 2
    v_lshrrev_b32 v4, 6, v0
    v_readfirstlane_b32 s34, v4''')
    a('''s_bfe_u32 s56, s2, 0x20001
    s_lshl_b32 s56, s56, 3
    s_lshr_b32 s58, s2, 5
    s_add_u32 s56, s56, s58
    s_lshl_b32 s58, s58, 1
    s_and_b32 s57, s2, 1
    s_lshl_b32 s57, s57, 2
    s_bfe_u32 s59, s2, 0x20003
    s_add_u32 s57, s57, s59''')
    VL16, VWSP = 232, 233
    a(f'''v_lshlrev_b32 v{VL16}, 4, v1
    v_lshrrev_b32 v4, 2, v2
    v_lshlrev_b32 v4, 3, v4
    v_and_b32 v5, 3, v2
    v_add_u32 v4, v4, v5
    v_lshlrev_b32 v{VWSP}, 12, v4
    v_lshl_add_u32 v{VWSP}, v3, 4, v{VWSP}''')
    for tau in range(4):
        a(f'''s_add_u32 s42, s34, {tau}
        s_bfe_u32 s43, s42, 0x10001
        s_lshl_b32 s43, s43, 5
        s_and_b32 s42, s42, 1
        s_lshl_b32 s42, s42, 2
        s_add_u32 s42, s42, s43
        s_lshl_b32 s43, s56, 6
        s_add_u32 s42, s42, s43
        s_lshl_b32 s42, s42, 12
        s_lshl_b32 s43, s34, 10
        s_add_u32 s{60+tau}, s42, s43''')
    p2_lane_setup(a)
    p2_tab14(a)
    a('s_waitcnt lgkmcnt(0)')
    srd(a, 8, 32, 33, 0x10000000)
    tags = p2_loads(a, 2)
    srd(a, 12, 64, 65, 2048*4096); srd(a, 52, 66, 67, 4096); srd(a, 48, 68, 69, 2048*1024)
    srd_off(a, 16, W1, WPB); srd_off(a, 20, W2, WPB); srd_off(a, 24, Z2N, 43*65536); srd_off(a, 28, PF, 22*131072)
    for kp in range(8): a(f's_add_u32 s{64+kp}, s58, {2*kp}\ns_and_b32 s{64+kp}, s{64+kp}, 15\ns_lshl_b32 s{64+kp}, s{64+kp}, 10')

    class Dma:
        def __init__(s, srdreg, n, ssrc, slds): s.srd, s.n, s.k, s.ssrc, s.slds = srdreg, n, 0, ssrc, slds
        def issue(s, vreg, cnt=1):
            for _ in range(cnt):
                if s.k >= s.n: return
                a(f's_mov_b32 m0, s{s.slds}\ns_add_u32 s{s.slds}, s{s.slds}, 1024')
                a(f'buffer_load_dwordx4 v{vreg}, s[{s.srd}:{s.srd+3}], s{s.ssrc} offen lds\ns_add_u32 s{s.ssrc}, s{s.ssrc}, 1024')
                s.k += 1
    wk = [0]
    def wsp(vreg, cnt):
        for _ in range(cnt):
            if wk[0] >= 32: return
            kp, tau = wk[0] >> 2, wk[0] & 3
            a(f's_lshr_b32 s59, s{64+kp}, 4\ns_add_u32 s59, s59, s{60+tau}')
            for h in range(2):
                r = ((2*kp+h)*4 + tau)*4
                a(f'buffer_load_dwordx4 {q(r,"a")}, v{vreg}, s[12:15], s59 offen offset:{64*h}')
            wk[0] += 1
    def dma_init(ssrc, slds, tile_bytes, per_wave, ldsbase, extra=0):
        a(f's_mul_i32 s{ssrc}, s57, {tile_bytes}\ns_mul_i32 s{slds}, s34, {per_wave}\ns_add_u32 s{ssrc}, s{ssrc}, s{slds}')
        if extra: a(f's_add_u32 s{ssrc}, s{ssrc}, {extra}')
        if ldsbase: a(f's_add_u32 s{slds}, s{slds}, {ldsbase}')
    dma_init(46, 47, 98304, 24576, LX)
    dW2 = Dma(20, 24, 46, 47)
    p2_tabs_rest(a, hook=lambda: dW2.issue(VL16))
    nw = cfg.get('wsp_p2', [4, 4, 0])
    p2_compute(a, 2, LY, tags, ' sc1', hook=lambda k: wsp(VWSP, nw[k]))
    ST_('p2end')
    a(f'''s_lshl_b32 s36, s34, 8
    s_add_u32 s36, s36, s2
    s_lshl_b32 s36, s36, 6
    s_add_u32 s36, s36, {FLH}
    v_mov_b32 v4, v{VL16}
    v_mov_b32 v5, v{VWSP}
    s_waitcnt vmcnt(0)''')
    flag(36)
    ST_('hflag')
    VL16, VWSP = 4, 5
    wsp(VWSP, cfg.get('wsp_h', 8))
    a('s_barrier')
    B2 = 64
    a(f's_and_b32 s36, s34, 1\ns_mul_i32 s36, s36, 49152\nv_add_u32 v6, s36, v4')
    for k in range(48): a(f'ds_read_b128 {q(B2+4*k)}, v6 offset:{1024*k}')
    a(f'''v_lshrrev_b32 v7, 3, v1
    v_lshlrev_b32 v7, 12, v7
    v_and_b32 v8, 7, v1
    v_lshlrev_b32 v9, 1, v3
    v_xor_b32 v8, v8, v9
    v_lshl_add_u32 v7, v8, 4, v7
    v_lshlrev_b32 v8, 6, v3
    v_add_u32 v8, v8, v2
    v_lshlrev_b32 v8, 6, v8
    s_lshr_b32 s36, s56, 3
    s_lshl_b32 s36, s36, 14
    s_lshl_b32 s37, s34, 10
    s_add_u32 s36, s36, s37
    s_add_u32 s36, s36, {FLH}''')
    a(f'''v_lshrrev_b32 v9, 2, v1
    v_lshlrev_b32 v9, 7, v9
    v_and_b32 v10, 3, v1
    v_lshl_add_u32 v9, v10, 3, v9
    v_add_u32 v9, {LY}, v9
    v_bfe_u32 v10, v1, 3, 2
    v_xor_b32 v11, s34, v10
    v_lshl_add_u32 v11, v11, 5, v9
    s_and_b32 s37, s34, 2
    v_xor_b32 v10, s37, v10
    v_lshl_add_u32 v9, v10, 5, v9
    v_xor_b32 v10, 32, v9''')
    a(f'''s_lshl_b32 s46, s34, 17
    s_lshl_b32 s37, s56, 7
    s_add_u32 s46, s46, s37
    s_add_u32 s46, s46, {HT}
    s_lshl_b32 s47, s34, 12
    s_add_u32 s47, s47, {LY}''')
    poll('h', 8, 36)
    ST_('hready')
    htag = []
    for c in range(4):
        for k in range(4):
            a(f's_mov_b32 m0, s47\ns_add_u32 s47, s47, {1024 if k < 3 else 13*1024}')
            a(f'buffer_load_dwordx4 v7, s[8:11], s46 offen sc1 lds\ns_add_u32 s46, s46, {32768 if k < 3 else 13*32768}')
        htag.append(a.vtag())
    a('s_waitcnt lgkmcnt(0)')
    dma_init(46, 47, 98304, 24576, LX)
    dW1 = Dma(16, 24, 46, 47)
    AC, AF, SQ = 16, 40, 56
    def rdA(ks):
        for t in range(2):
            r = AF + 8*(ks & 1) + 4*t
            a(f'ds_read_b64_tr_b16 v[{r}:{r+1}], v{9+t} offset:{4096*ks}\nds_read_b64_tr_b16 v[{r+2}:{r+3}], v{9+t} offset:{4096*ks+2048}')
        return a.ltag()
    a.vwait(htag[0]); a('s_barrier')
    lt = rdA(0)
    for ks in range(16):
        cur = lt
        if ks < 15:
            if (ks+1) % 4 == 0: a.vwait(htag[(ks+1)//4]); a('s_barrier')
            lt = rdA(ks+1)
        a.lwait(cur)
        for t in range(2):
            A = AF + 8*(ks & 1) + 4*t
            for b in range(3):
                acc = AC + 12*t + 4*b
                a(f'{MF} {q(acc)}, {q(A)}, {q(B2+4*(16*b+ks))}, {"0" if ks == 0 else q(acc)}')
                for r in ([A, A+1] if b == 0 else [A+2] if b == 1 else [A+3]):
                    a(f'v_dot2_f32_bf16 v{SQ+t}, v{r}, v{r}, {"0" if (ks == 0 and r == A) else f"v{SQ+t}"}')
        dW1.issue(VL16, 2 if ks < 8 else 1)
    ST_('z2gemm')
    HF = 64
    a('v_mov_b32 v58, 1.0')
    RH = 128
    for t in range(2): a(f'{MF32} {q(RH+4*t)}, v{SQ+t}, v58, 0')
    for ks in range(16):
        a(f'ds_read_b64_tr_b16 v[{HF+4*ks}:{HF+4*ks+1}], v11 offset:{4096*ks}\nds_read_b64_tr_b16 v[{HF+4*ks+2}:{HF+4*ks+3}], v11 offset:{4096*ks+2048}')
    C1, C2, GT = 60, 62, 136
    c1 = -2*math.log2(math.e)*math.sqrt(2/math.pi)
    a(f'v_mov_b32 v{C1}, {fl(c1)}\nv_mov_b32 v{C1+1}, {fl(c1)}\nv_mov_b32 v{C2}, {fl(c1*0.044715)}\nv_mov_b32 v{C2+1}, {fl(c1*0.044715)}\nv_mov_b32 v59, {fl(1e-5)}')
    for k in range(8): a(f'v_fmamk_f32 v{RH+k}, v{RH+k}, {fl(1/512)}, v59')
    for k in range(8): a(f'v_rsq_f32 v{RH+k}, v{RH+k}')
    prs = []
    for t in range(2):
        for b in range(3):
            for h in (0, 2):
                r = AC + 12*t + 4*b + h
                a(f'v_pk_mul_f32 {p2r(r)}, {p2r(r)}, {p2r(RH+4*t+h)}'); prs.append(r)
    gelu(a, prs, C1, C2, GT)
    SS = 144
    for t in range(2):
        for h in (0, 2):
            z = lambda b: p2r(AC + 12*t + 4*b + h)
            a(f'v_pk_add_f32 {p2r(SS+4*t+h)}, {z(0)}, {z(1)}\nv_pk_mul_f32 {p2r(SS+8+4*t+h)}, {z(0)}, {z(0)}')
    for t in range(2):
        for h in (0, 2):
            z = lambda b: p2r(AC + 12*t + 4*b + h)
            a(f'v_pk_add_f32 {p2r(SS+4*t+h)}, {p2r(SS+4*t+h)}, {z(2)}\nv_pk_fma_f32 {p2r(SS+8+4*t+h)}, {z(1)}, {z(1)}, {p2r(SS+8+4*t+h)}')
    for t in range(2):
        for h in (0, 2):
            z = lambda b: p2r(AC + 12*t + 4*b + h)
            a(f'v_pk_fma_f32 {p2r(SS+8+4*t+h)}, {z(2)}, {z(2)}, {p2r(SS+8+4*t+h)}')
    D1, D2 = 160, 168
    for k in range(8): a(f'v_add_f32_dpp v{D1+k}, v{SS+k}, v{SS+k} row_ror:8 row_mask:0xf bank_mask:0x3')
    for k in range(8): a(f'v_add_f32_dpp v{D1+k}, v{SS+8+k}, v{SS+8+k} row_ror:8 row_mask:0xf bank_mask:0xc')
    for k in range(4): a(f'v_add_f32_dpp v{D2+k}, v{D1+k}, v{D1+k} row_half_mirror row_mask:0xf bank_mask:0x5')
    for k in range(4): a(f'v_add_f32_dpp v{D2+k}, v{D1+4+k}, v{D1+4+k} row_half_mirror row_mask:0xf bank_mask:0xa')
    for k in range(4): a(f'v_add_f32_dpp v{D2+k}, v{D2+k}, v{D2+k} quad_perm:[1,0,3,2] row_mask:0xf bank_mask:0xf')
    for k in range(4): a(f'v_add_f32_dpp v{D2+k}, v{D2+k}, v{D2+k} quad_perm:[2,3,0,1] row_mask:0xf bank_mask:0xf')
    a(f'''s_lshr_b32 s38, s34, 1
    s_lshl_b32 s36, s56, 1
    s_add_u32 s38, s38, s36
    s_lshl_b32 s39, s38, 12
    s_add_u32 s39, s39, {ST}
    s_and_b32 s40, s34, 1
    s_lshl_b32 s36, s57, 1
    s_add_u32 s36, s36, s40
    s_lshl_b32 s36, s36, 8
    s_add_u32 s36, s36, s39
    v_and_b32 v12, 60, v1
    v_lshlrev_b32 v12, 2, v12
    s_mov_b32 s44, 0x11111111
    s_mov_b32 s45, 0x11111111
    s_mov_b64 exec, s[44:45]
    buffer_store_dwordx4 {q(D2)}, v12, s[8:11], s36 offen sc1
    s_mov_b64 exec, -1
    v_and_b32 v13, 3, v1
    v_lshl_add_u32 v13, v13, 8, v12''')
    ST_('stats_pub')
    a('s_waitcnt vmcnt(1) lgkmcnt(0)\ns_barrier')
    dma_init(46, 47, 65536, 16384, LY, QF)
    dQ = Dma(8, 16, 46, 47)
    Z1, WB = 176, 200
    a(f'v_add_u32 v6, 49152, v4')
    def rdW(ks):
        for b in range(6):
            a(f'ds_read_b128 {q(WB+24*(ks&1)+4*b)}, v{4 if b < 3 else 6} offset:{((b%3)*16+ks)*1024}')
        return a.ltag()
    lt = rdW(0)
    for ks in range(16):
        cur = lt
        if ks < 15: lt = rdW(ks+1)
        a.lwait(cur)
        for b in range(6):
            a(f'{MF} {q(Z1+4*b)}, {q(WB+24*(ks&1)+4*b)}, {q(HF+4*ks)}, {"0" if ks == 0 else q(Z1+4*b)}')
            if b < 4: a(f'v_dot2_f32_bf16 v{SQ}, v{HF+4*ks+b}, v{HF+4*ks+b}, {"0" if (ks == 0 and b == 0) else f"v{SQ}"}')
        dQ.issue(VL16, 1)
    ST_('z1gemm')
    SG = 144
    a('s_mov_b32 s43, 0')
    a.label('st_poll')
    for r in range(4): a(f'buffer_load_dwordx4 {q(SG+4*r)}, v13, s[8:11], s39 offen offset:{1024*r} sc1')
    a(f'''s_add_u32 s43, s43, 1
    s_waitcnt vmcnt(0)
    v_max3_u32 v15, v{SG}, v{SG+4}, v{SG+8}
    v_max3_u32 v15, v15, v{SG+12}, v{SG+3}
    v_max3_u32 v15, v15, v{SG+7}, v{SG+11}
    v_max_u32 v15, v15, v{SG+15}
    v_cmp_eq_u32 vcc, -1, v15
    s_cmp_ge_u32 s43, {LIMIT}
    s_cbranch_scc1 st_go
    s_cbranch_vccnz st_poll''')
    a.label('st_go')
    ST_('stats_got')
    for h in (0, 2): a(f'v_pk_add_f32 {p2r(SG+h)}, {p2r(SG+h)}, {p2r(SG+4+h)}\nv_pk_add_f32 {p2r(SG+8+h)}, {p2r(SG+8+h)}, {p2r(SG+12+h)}')
    for h in (0, 2): a(f'v_pk_add_f32 {p2r(SG+h)}, {p2r(SG+h)}, {p2r(SG+8+h)}')
    for k in range(4): a(f'v_add_f32_dpp v{SG+k}, v{SG+k}, v{SG+k} quad_perm:[1,0,3,2] row_mask:0xf bank_mask:0xf')
    for k in range(4): a(f'v_add_f32_dpp v{SG+k}, v{SG+k}, v{SG+k} quad_perm:[2,3,0,1] row_mask:0xf bank_mask:0xf')
    MN, VR = 152, 160
    a(f'v_mov_b32 v57, {fl(1/688)}')
    for t in range(2):
        for k in range(4):
            a(f'v_mul_f32_dpp v{MN+4*t+k}, v{SG+k}, v57 row_newbcast:{4*t} row_mask:0xf bank_mask:0xf')
            a(f'v_mul_f32_dpp v{VR+4*t+k}, v{SG+k}, v57 row_newbcast:{8+4*t} row_mask:0xf bank_mask:0xf')
    for h in range(0, 8, 2): a(f'v_pk_fma_f32 {p2r(VR+h)}, {p2r(MN+h)}, {p2r(MN+h)}, {p2r(VR+h)} neg_lo:[1,0,0] neg_hi:[1,0,0]')
    for k in range(8): a(f'v_max_f32 v{VR+k}, 0, v{VR+k}')
    for k in range(8): a(f'v_add_f32 v{VR+k}, v59, v{VR+k}')
    for k in range(8): a(f'v_rsq_f32 v{VR+k}, v{VR+k}')
    for h in range(0, 8, 2): a(f'v_pk_mul_f32 {p2r(MN+h)}, {p2r(MN+h)}, {p2r(VR+h)}')
    a(f'''s_mul_i32 s36, s57, 6
    s_mul_i32 s37, s40, 3
    s_add_u32 s36, s36, s37
    s_lshl_b32 s36, s36, 6
    s_add_u32 s36, s36, s38
    s_lshl_b32 s36, s36, 10''')
    for b in range(3):
        for t in range(2):
            for h in (0, 2):
                r = AC + 12*t + 4*b + h
                a(f'v_pk_fma_f32 {p2r(r)}, {p2r(r)}, {p2r(VR+4*t+h)}, {p2r(MN+4*t+h)} neg_lo:[0,0,1] neg_hi:[0,0,1]')
        for t in range(2):
            for h in (0, 2):
                r = AC + 12*t + 4*b + h
                a(f'v_cvt_pk_bf16_f32 v{40+4*b+2*t+h//2}, v{r}, v{r+1}')
        a(f'buffer_store_dwordx4 {q(40+4*b)}, v4, s[24:27], s36 offen sc1\ns_add_u32 s36, s36, 65536')
    ztag = a.vtag()
    ST_('z2n_st')
    a(f'''s_lshr_b32 s36, s60, 12
    v_lshrrev_b32 v12, 12, v5
    v_add_u32 v12, s36, v12
    v_lshlrev_b32 v13, 1, v12
    buffer_load_ushort v56, v13, s[52:55], 0 offen'''.replace('v56', 'v52'))
    a(f'v_lshlrev_b32 v13, 2, v12\ns_mov_b32 s36, {MX}\nbuffer_load_dword v53, v13, s[8:11], s36 offen')
    btag = a.vtag()
    a(f'{MF32} {q(RH)}, v58, v{SQ}, 0')
    a(f'v_fmamk_f32 v{RH}, v{RH}, {fl(1/512)}, v59\nv_rsq_f32 v{RH}, v{RH}')
    prs = []
    for r in range(Z1, Z1+24, 2):
        a(f'v_pk_mul_f32 {p2r(r)}, {p2r(r)}, {p2r(RH)} op_sel_hi:[1,0]'); prs.append(r)
    gelu(a, prs[:4], C1, C2, GT)
    a(f'''s_lshl_b32 s36, s57, 6
    s_add_u32 s36, s36, s38
    s_lshl_b32 s36, s36, 1
    s_add_u32 s36, s36, s40
    s_lshl_b32 s36, s36, 6
    s_add_u32 s36, s36, {FLZ}''')
    a.vwait(btag)
    flag(36)
    ST_('zflag')
    a('s_barrier')
    wsp(VWSP, 32)
    dma_init(46, 47, 90112, 22528, LX, WO)
    dO = Dma(8, 22, 46, 47)
    gelu(a, prs[4:], C1, C2, GT)
    HA = 16
    for mb in range(4): a(f'v_mov_b32 v{32+mb}, v53')
    a(f'v_add_u32 v6, {LY}, v4')
    def rdQ(ks):
        for mb in range(4): a(f'ds_read_b128 {q(WB+16*(ks&1)+4*mb)}, v6 offset:{(mb*16+ks)*1024}')
        return a.ltag()
    lt = rdQ(0)
    for ks in range(16):
        cur = lt
        if ks < 15: lt = rdQ(ks+1)
        a.lwait(cur)
        for mb in range(4):
            a(f'{MF} {q(HA+4*mb)}, {q(WB+16*(ks&1)+4*mb)}, {q(HF+4*ks)}, {q(32) if ks == 0 else q(HA+4*mb)}')
        dO.issue(VL16, 2)
    ST_('hgemm')
    BV = 36
    a(f'v_lshlrev_b32 v{BV}, 16, v52')
    for k in range(1, 4): a(f'v_mov_b32 v{BV+k}, v{BV}')
    a(f'''v_and_b32 v8, 31, v1
    v_lshlrev_b32 v8, 6, v8
    s_lshl_b32 s36, s57, 2
    s_add_u32 s36, s36, s34
    s_lshl_b32 s36, s36, 11
    s_add_u32 s36, s36, {FLZ}
    s_mul_i32 s37, s57, {6*65536}
    s_lshl_b32 s41, s34, 14
    s_add_u32 s37, s37, s41
    v_add_u32 v7, s37, v4''')
    for tau in range(1, 4):
        a(f's_add_u32 s41, s34, {tau}\ns_and_b32 s41, s41, 3\ns_mul_i32 s41, s41, 3072\ns_add_u32 s41, s41, {LY+(tau-1)*1024}\nv_add_u32 v{8+tau}, s41, v4')
    a(f's_mul_i32 s41, s34, 3072\ns_add_u32 s41, s41, {LY}\nv_add_u32 v13, s41, v4')
    a(f'''s_mul_i32 s41, s57, {3*131072}
    s_lshl_b32 s42, s56, 2
    s_add_u32 s42, s42, s34
    s_lshl_b32 s42, s42, 10
    s_add_u32 s41, s41, s42''')
    poll('z', 8, 36)
    ST_('zready')
    ZB, GA, RD, PP = 48, 200, 232, 244
    ztags = {}
    def ldZ(blk, kp):
        for h in range(2):
            a(f'buffer_load_dwordx4 {q(ZB+64*(blk&1)+4*(2*kp+h))}, v7, s[24:27], s{64+kp} offen offset:{1024*h} sc1')
            ztags[(blk, 2*kp+h)] = a.vtag()
        if kp == 7: a('v_add_u32 v7, 65536, v7')
    def red_write(blk):
        for tau in range(1, 4): a(f'ds_write_b128 v{8+tau}, {q(GA+16*(blk&1)+4*tau)} offset:{12288*(blk&1)}')
    def red_read(blk):
        a('s_waitcnt lgkmcnt(0)\ns_barrier')
        for k in range(3): a(f'ds_read_b128 {q(RD+4*k)}, v13 offset:{12288*(blk&1)+1024*k}')
    def red_fin(blk):
        g0 = GA + 16*(blk & 1)
        a('s_waitcnt lgkmcnt(0)')
        for h in (0, 2): a(f'v_pk_add_f32 {p2r(RD+h)}, {p2r(RD+h)}, {p2r(RD+4+h)}\nv_pk_add_f32 {p2r(RD+8+h)}, {p2r(RD+8+h)}, {p2r(g0+h)}')
        for h in (0, 2): a(f'v_pk_add_f32 {p2r(RD+h)}, {p2r(RD+h)}, {p2r(RD+8+h)}')
        for h in (0, 2): a(f'v_pk_mul_f32 {p2r(RD+h)}, {p2r(RD+h)}, {p2r(Z1+4*blk+h)}')
        pp = PP + 4*((blk >> 1) & 1)
        for h in (0, 2): a(f'v_cvt_pk_bf16_f32 v{pp+2*(blk&1)+h//2}, v{RD+h}, v{RD+h+1}')
        if blk & 1: a(f'buffer_store_dwordx4 {q(pp)}, v4, s[28:31], s41 offen sc1\ns_add_u32 s41, s41, 131072')
    for kp in range(8): ldZ(0, kp)
    a('s_barrier')
    for blk in range(6):
        for ks in range(16):
            if blk < 5 and ks % 2 == 0: ldZ(blk+1, ks//2)
            a.vwait(ztags[(blk, ks)])
            for tau in range(4):
                acc = GA + 16*(blk & 1) + 4*tau
                c = q(acc) if ks else (q(BV) if tau == 0 else '0')
                a(f'{MF} {q(acc)}, {q(ZB+64*(blk&1)+4*ks)}, {q((ks*4+tau)*4,"a")}, {c}')
            if blk > 0:
                if ks == 2: red_write(blk-1)
                if ks == 6: red_read(blk-1)
                if ks == 9: red_fin(blk-1)
    red_write(5); red_read(5); red_fin(5)
    ST_('gemm2')
    a(f'''s_lshl_b32 s36, s42, 9
    s_lshr_b32 s36, s36, 10
    s_add_u32 s37, s36, {FLP}
    s_lshl_b32 s36, s57, 6
    s_add_u32 s36, s36, s37
    v_and_b32 v8, 7, v1
    v_lshlrev_b32 v8, 6, v8
    s_waitcnt vmcnt(0)''')
    flag(36)
    a('v_add_u32 v6, 45056, v4')
    def wo_reg(mb, ks):
        k = ks*4 + mb
        return q(4*k, 'a') if k < 64 else q(160 + 4*(k-64))
    for ks in range(22):
        for mb in range(4):
            a(f'ds_read_b128 {wo_reg(mb, ks)}, v{4 if mb < 2 else 6} offset:{((mb&1)*22+ks)*1024}')
    poll('p', 8, 37)
    ST_('pready')
    PB = 64
    a('v_add_u32 v7, s42, v4')
    pt = []
    for ks in range(22):
        a(f's_mov_b32 s36, {ks*131072}\nbuffer_load_dwordx4 {q(PB+4*ks)}, v7, s[28:31], s36 offen sc1'); pt.append(a.vtag())
    a(f'''v_lshlrev_b32 v12, 10, v12
    v_lshl_add_u32 v12, v3, 5, v12
    s_lshl_b32 s36, s57, 7
    s_waitcnt lgkmcnt(0)''')
    for ks in range(22):
        a.vwait(pt[ks])
        for mb in range(4): a(f'{MF} {q(HA+4*mb)}, {wo_reg(mb, ks)}, {q(PB+4*ks)}, {q(HA+4*mb)}')
    for k in range(8): a(f'v_cvt_pk_bf16_f32 v{40+k}, v{HA+2*k}, v{HA+2*k+1}')
    a(f'buffer_store_dwordx4 {q(40)}, v12, s[48:51], s36 offen\nbuffer_store_dwordx4 {q(44)}, v12, s[48:51], s36 offen offset:16')
    if stamp:
        a('s_waitcnt vmcnt(0)')
        ST_('end')
        a(f's_waitcnt lgkmcnt(0)\ns_lshl_b32 s36, s2, 2\ns_add_u32 s36, s36, s34\ns_lshl_b32 s36, s36, 6\ns_add_u32 s36, s36, {DBG}\nv_mov_b32 v14, 0')
        for k in range(16): a(f'v_mov_b32 v{16+k}, s{72+2*min(k, ns[0]-1)}')
        a('s_mov_b64 exec, 1')
        for k in range(4): a(f'buffer_store_dwordx4 {q(16+4*k)}, v14, s[8:11], s36 offen offset:{16*k}')
    a.label('km_done')
    a('s_endpgm')
    assert ns[0] <= 15
    return kdesc(K, 512, 102, 256), f'; @launch kernel={K} grid=(256,1,1) block=(256,1,1) lds=163840', names
```

```python
MB = 1 << 20
UH   = 0
WT   = 2*MB
HT   = 4*MB
W1   = 6*MB
W2   = 7*MB
QF   = 8*MB
WO   = 9*MB
SIG  = 10*MB
MX   = 10*MB + 8192
ST   = 11*MB
FL   = 12*MB
Z2N  = 13*MB
PF   = 16*MB
DBG  = 32*MB
WPB = 43*16384

def pi32(p):
    return 8*((p >> 2) & 3) + 4*(p >> 4) + (p & 3)
def ipi32(s):
    return 16*((s >> 2) & 1) + 4*(s >> 3) + (s & 3)
assert all(ipi32(pi32(p)) == p for p in range(32))
```

```python
import sys, json
from asmlib import *
from gen_k1 import gen_k1
from gen_km import gen_km
def build_asm(stamp=False, cfg={}):
    a = Asm()
    a.raw('.amdgcn_target "amdgcn-amd-amdhsa--gfx950"\n.text')
    d1, l1 = gen_k1(a, [('pf1', 'k1_kernel', 32768, True)])
    a.hist = []
    d2, l2, names = gen_km(a, stamp, cfg)
    a.raw('.fill 8192, 4, 0')
    out = '\n'.join([l1, l2]) + '\n' + a.text() + '.section .rodata,"a"\n' + d1 + d2
    return out, names
if __name__ == '__main__':
    out, names = build_asm(len(sys.argv) > 2 and sys.argv[2] == 'stamp')
    open(sys.argv[1], 'w').write(out)
    print(names)
```

```python
import re

REG_RE = re.compile(r'(?<![\w.])([vas])(?:(\d+)|\[(\d+):(\d+)\])(?![\w])')
def regs_of(tok):
    out = []
    for m in REG_RE.finditer(tok):
        k = m.group(1)
        if m.group(2) is not None: out.append((k, int(m.group(2))))
        else: out += [(k, i) for i in range(int(m.group(3)), int(m.group(4)) + 1)]
    t = tok.strip()
    if re.search(r'\bvcc\b', t): out += [('s', 106), ('s', 107)]
    if re.search(r'\bvcc_lo\b', t): out += [('s', 106)]
    if re.search(r'\bvcc_hi\b', t): out += [('s', 107)]
    if re.search(r'\bexec\b', t): out += [('s', 126), ('s', 127)]
    if re.search(r'\bexec_lo\b', t): out += [('s', 126)]
    if re.search(r'\bexec_hi\b', t): out += [('s', 127)]
    if re.search(r'\bm0\b', t): out += [('s', 124)]
    return out

TRANS = ('v_exp_f32', 'v_log_f32', 'v_rcp_f32', 'v_rsq_f32', 'v_sqrt_f32', 'v_sin_f32', 'v_cos_f32')
def split_ops(s):
    ops, depth, cur = [], 0, ''
    for ch in s:
        if ch == '[': depth += 1
        if ch == ']': depth -= 1
        if ch == ',' and depth == 0: ops.append(cur); cur = ''
        else: cur += ch
    ops.append(cur)
    return [o.strip() for o in ops]

class Ins:
    def __init__(self, text):
        self.text = text
        t = text.split(';')[0].strip()
        parts = t.split(None, 1)
        self.op = op = parts[0]
        base = re.sub(r'_(e32|e64|dpp|sdwa)$', '', op)
        self.base = base
        rest = parts[1] if len(parts) > 1 else ''
        ops = split_ops(rest) if rest else []
        clean = []
        for o in ops:
            o2 = re.sub(r'\b(op_sel|op_sel_hi|neg_lo|neg_hi|quad_perm):\[[^\]]*\]', '', o)
            clean.append(o2)
        self.kind = 'other'; self.w = []; self.r = []; self.passes = 0
        self.dpp = ('quad_perm' in t or 'row_' in t or op.endswith('_dpp'))
        self.A = self.B = self.C = []
        R = [regs_of(o) for o in clean]
        allr = lambda L: [x for l in L for x in l]
        if op.startswith('v_mfma'):
            self.kind = 'mfma'
            self.w = R[0]; self.A, self.B, self.C = R[1], R[2], R[3]; self.r = R[1] + R[2] + R[3]
            self.sgemm = op.endswith('_f32') and ('x4_f32' in op or 'x2_f32' in op)
            if '16x16x32' in op or '16x16x16' in op: self.passes = 4
            elif '32x32x16' in op or '32x32x8' in op: self.passes = 8
            elif '16x16x4_f32' in op: self.passes = 8
            elif '32x32x2_f32' in op: self.passes = 16
            else: raise ValueError(op)
        elif op.startswith('v_'):
            self.kind = 'valu'
            if base.startswith('v_cmp'):
                self.w = R[0]; self.r = allr(R[1:])
                if base.startswith('v_cmpx'): self.w = self.w + [('s', 126), ('s', 127)]
            elif base in ('v_swap_b32', 'v_permlane32_swap_b32', 'v_permlane16_swap_b32'):
                self.w = R[0] + R[1]; self.r = R[0] + R[1]
            elif base in ('v_add_co_u32', 'v_addc_co_u32', 'v_sub_co_u32'):
                self.w = R[0] + R[1]; self.r = allr(R[2:])
            elif base == 'v_nop':
                pass
            else:
                self.w = R[0]; self.r = allr(R[1:])
                if base in ('v_fmac_f32', 'v_dot2c_f32_bf16', 'v_pk_fmac_f16', 'v_writelane_b32') or self.dpp: self.r = self.r + R[0]
            self.trans = base in TRANS
            self.dot = base.startswith('v_dot')
        elif op.startswith(('buffer_', 'global_')):
            self.kind = 'vmem'
            lds = re.search(r'\blds\b', t) is not None or op.startswith('global_load_lds')
            self.ldsdma = lds
            if '_load' in op and not lds:
                self.w = R[0]; self.r = allr(R[1:])
                if 'd16' in op: self.r = self.r + R[0]
            elif 'atomic' in op and re.search(r'\bsc0\b', t):
                self.w = R[0]; self.r = allr(R)
            else:
                self.r = allr(R)
            self.widestore = None
            if 'store_dwordx4' in op or 'store_dwordx3' in op:
                self.widestore = R[0] if op.startswith('buffer') else R[1]
        elif op.startswith('ds_'):
            self.kind = 'ds'
            if op.startswith(('ds_read', 'ds_bpermute', 'ds_permute', 'ds_swizzle')): self.w = R[0]; self.r = allr(R[1:])
            else: self.r = allr(R)
        elif op.startswith('s_'):
            self.kind = 'salu'
            if op in ('s_nop', 's_waitcnt', 's_barrier', 's_endpgm', 's_sleep', 's_setprio') or op.startswith(('s_cbranch', 's_branch')):
                pass
            elif op.startswith('s_cmp'):
                self.r = allr(R)
            else:
                self.w = R[0] if R else []; self.r = allr(R[1:])
                if 'saveexec' in op: self.w = self.w + [('s', 126), ('s', 127)]
        self.ws = set(self.w); self.rs = set(self.r)
        self.states = 1
        if op == 's_nop': self.states = int(rest, 0) + 1
        self.isbranch = op.startswith(('s_cbranch', 's_branch', 's_setpc', 's_swappc'))

def need(p, c):
    n = 0
    vw = {x for x in p.ws if x[0] != 's'}; sw = {x for x in p.ws if x[0] == 's'}
    if p.kind == 'valu':
        if c.kind == 'mfma' and vw & c.rs: n = max(n, 2)
        if c.kind == 'valu':
            if p.trans and (vw & c.rs): n = max(n, 1)
            if (c.dpp or c.base.startswith('v_permlane')) and (vw & c.rs): n = max(n, 2)
            if c.base in ('v_readlane_b32', 'v_readfirstlane_b32') and (vw & c.rs): n = max(n, 1)
            if sw & c.rs: n = max(n, 4 if c.base in ('v_readlane_b32', 'v_writelane_b32') else 2)
            if ('s', 126) in sw: n = max(n, 5 if c.dpp else 4)
        if p.dot and c.kind in ('valu', 'mfma', 'vmem', 'ds') and (vw & (c.rs | c.ws)):
            same = c.kind == 'valu' and c.base == p.base
            if same:
                ops = split_ops(c.text.split(';')[0].strip().split(None, 1)[1])
                ab = set(regs_of(ops[1]) + regs_of(ops[2]))
                if vw & ab: n = max(n, 3)
            else: n = max(n, 3)
        if c.kind == 'vmem' and (sw & c.rs): n = max(n, 5)
        if c.kind == 'mfma' and ('s', 126) in sw: n = max(n, 4)
        if c.kind == 'salu' and (sw & c.rs): n = max(n, 1)
        if c.isbranch and 'vcc' in c.op and (('s', 106) in sw): n = max(n, 1)
    elif p.kind == 'mfma':
        P = p.passes
        if c.kind == 'mfma':
            if p.ws & (set(c.A) | set(c.B)): n = max(n, P + 2 if p.sgemm else P + 4)
            if p.ws & set(c.C):
                exact = (p.w == c.C and p.passes == c.passes and p.sgemm == c.sgemm)
                if not exact:
                    if p.sgemm: n = max(n, P if c.sgemm else 0)
                    else: n = max(n, P + 2)
            elif p.ws & c.ws: n = max(n, P + 4)
        elif c.kind in ('valu', 'vmem', 'ds'):
            if p.ws & (c.rs | c.ws): n = max(n, P + 2 if p.sgemm else P + 4)
            if c.kind == 'valu' and not p.sgemm and (set(p.C) & c.ws): n = max(n, P - 1)
    elif p.kind == 'vmem':
        if p.widestore and (set(p.widestore) & c.ws): n = max(n, 2)
    elif p.kind == 'salu':
        if ('s', 124) in sw and c.kind == 'vmem' and c.ldsdma: n = max(n, 1)
    return n

def maxneed(p):
    if p.kind == 'mfma': return p.passes + 4
    if p.kind == 'valu':
        if any(x[0] == 's' for x in p.ws): return 5
        return 3 if p.dot else 2
    if p.kind == 'vmem' and p.widestore: return 2
    if p.kind == 'salu' and ('s', 124) in p.ws: return 1
    return 0

def gapcost(c):
    if c.kind in ('vmem', 'ds'): return 1.5
    if c.kind == 'valu': return 2 if c.trans else 1
    if c.op == 's_waitcnt': return 0.5
    if c.op == 's_nop': return c.states
    return 1

class Asm:
    def __init__(self):
        self.out = []; self.hist = []; self.nops = 0
        self.nvm = 0; self.nlg = 0
        self.bgq = []; self.bg_int = 0; self.bg_acc = 0; self.in_bg = False
        self.gapmode = False; self.gap = 0; self.partial = False
    def bg_drain(self, n=10**9):
        self.in_bg = True
        while self.bgq and n > 0:
            for cost, f in self.bgq.pop(0): f()
            n -= 1; self.partial = False
        self.in_bg = False; self.bg_acc = 0
    def bg_finish_partial(self):
        if self.partial: self.bg_drain(1)
    def bg_set(self, items, interval, delay=0):
        self.bgq = self.bgq + [list(x) for x in items]; self.bg_int = interval; self.bg_acc = -delay
    def bg_off(self):
        self.bg_finish_partial(); self.bg_int = 0
    def vtag(self): return self.nvm
    def ltag(self): return self.nlg
    def vwait(self, tag): self(f's_waitcnt vmcnt({min(63, self.nvm - tag)})')
    def lwait(self, tag): self(f's_waitcnt lgkmcnt({min(15, self.nlg - tag)})')
    def raw(self, s): self.out.append(s)
    def _pad(self, k):
        while k > 0:
            n = min(k, 16)
            i = Ins(f's_nop {n-1}'); self.out.append(f'  s_nop {n-1}'); self.hist.append(i); k -= n; self.nops += n
    def flush(self):
        d = 0; k = 0
        for p in reversed(self.hist[-24:]):
            k = max(k, maxneed(p) - d); d += p.states
        self._pad(k)
    def label(self, name, flush=True):
        if flush: self.flush()
        self.out.append(f'{name}:')
    def __call__(self, text, flush=None):
        for line in text.split('\n'):
            line = line.strip()
            if not line or line.startswith(';'): continue
            if line.endswith(':'): self.label(line[:-1]); continue
            if line.startswith('.'): self.out.append(line); continue
            c = Ins(line)
            if c.kind == 'mfma' and self.gapmode and self.bg_int and not self.in_bg:
                while self.bgq and (self.partial or self.bg_acc >= self.bg_int) and self.gap + self.bgq[0][0][0] <= 2:
                    if not self.partial: self.bg_acc = 0
                    self.in_bg = True
                    self.bgq[0].pop(0)[1]()
                    self.in_bg = False
                    self.partial = True
                    if not self.bgq[0]: self.bgq.pop(0); self.partial = False
            if c.isbranch and flush is not False:
                d = 1; k = 0
                for p in reversed(self.hist[-24:]):
                    k = max(k, maxneed(p) - d); d += p.states
                self._pad(k)
            d = 0; k = 0
            for p in reversed(self.hist[-24:]):
                k = max(k, need(p, c) - d); d += p.states
                if d > 24: break
            self._pad(k)
            self.out.append('  ' + line); self.hist.append(c)
            if c.kind == 'vmem': self.nvm += 1
            if c.kind == 'ds': self.nlg += 1
            if c.kind == 'mfma': self.gap = 0
            else: self.gap += k + gapcost(c)
            if self.gapmode: self.bg_acc += 4*c.passes if c.kind == 'mfma' else 0
            else: self.bg_acc += 4*k + (4*c.passes if c.kind == 'mfma' else 8 if (c.kind == 'valu' and c.trans) else 4*c.states)
        if not self.in_bg: self.vtag0 = self.nvm; self.ltag0 = self.nlg
        if self.bg_int and not self.gapmode and not self.in_bg and self.bgq and (self.partial or self.bg_acc >= self.bg_int):
            self.bg_drain(1)
    def text(self): return '\n'.join(self.out) + '\n'

def vr(b, n=None, k='v'):
    return f'{k}{b}' if n is None or n == 1 else f'{k}[{b}:{b+n-1}]'
def kdesc(name, vgpr, sgpr, accum):
    return f'''.p2align 6
.amdhsa_kernel {name}
  .amdhsa_next_free_vgpr {vgpr}
  .amdhsa_next_free_sgpr {sgpr}
  .amdhsa_accum_offset {accum}
  .amdhsa_group_segment_fixed_size 0
  .amdhsa_kernarg_size 88
  .amdhsa_user_sgpr_count 2
  .amdhsa_user_sgpr_kernarg_segment_ptr 1
  .amdhsa_system_sgpr_workgroup_id_x 1
.end_amdhsa_kernel
'''
```

```python
MB = 1 << 20
KB = 1024
E1   = 0
HT   = 4*MB
Z2N  = 6*MB
PF   = Z2N + 43*65536
W1   = PF + 22*131072
WPB  = 43*16384
W2   = W1 + WPB
QF   = W2 + WPB
WO   = QF + 512*KB
ST   = WO + 8*90112
SIG  = ST + 256*KB
MX   = SIG + 32*KB
EP   = MX + 8*KB
FL1  = EP + 4*KB
FLH  = FL1 + 64*KB
FLZ  = FLH + 64*KB
FLP  = FLZ + 64*KB
FLW  = FLP + 192*KB
DBG  = 32*MB
def pi32(p): return 8*((p >> 2) & 3) + 4*(p >> 4) + (p & 3)
print_end = FLW + 48*4*64
```

```python
import math, struct, sys
from asmlib import *
from layout3 import *

def fl(x): return '0x%08x' % struct.unpack('<I', struct.pack('<f', x))[0]
MF = 'v_mfma_f32_16x16x32_bf16'
MF32 = 'v_mfma_f32_16x16x4_f32'
q = lambda b, k='v': f'{k}[{b}:{b+3}]'
p2r = lambda b: f'v[{b}:{b+1}]'
NEG1 = ' neg_lo:[1,0,0] neg_hi:[1,0,0]'
LX, LY = 0, 98304
LIMIT = 400000
KNAME = 'sequential_preLN__spectral_gfnet__mixer_gmlp__prompt_kernel'
L_XROW, L_E1S, L_SIGS, L_RIN, L_ROUT = LX, LX + 8192, LX + 24576, LX + 32768, LX + 49152
L_EXCH, L_GAT, L_SIG, L_WSP = LY, LY + 8192, LY + 24576, LY + 32768
B_WO, B_QF, B_END = 88, 132, 196

def cmul(a, dre, dim, re, im, c, s, conj, n=8):
    for h in range(0, n, 2):
        P = lambda b: p2r(b+h)
        a(f'v_pk_mul_f32 {P(dre)}, {P(re)}, {P(c)}')
        a(f'v_pk_mul_f32 {P(dim)}, {P(im)}, {P(c)}')
    for h in range(0, n, 2):
        P = lambda b: p2r(b+h)
        a(f'v_pk_fma_f32 {P(dre)}, {P(im)}, {P(s)}, {P(dre)}' + ('' if conj else NEG1))
        a(f'v_pk_fma_f32 {P(dim)}, {P(re)}, {P(s)}, {P(dim)}' + (NEG1 if conj else ''))
def pack8(a, dst, src):
    for h in range(4): a(f'v_cvt_pk_bf16_f32 v{dst+h}, v{src+2*h}, v{src+2*h+1}')
def gelu(a, regs, C1, C2, T):
    G = 4
    for b in range(0, len(regs), G):
        grp = regs[b:b+G]
        for k, r in enumerate(grp): a(f'v_pk_mul_f32 {p2r(T+2*k)}, {p2r(r)}, {p2r(r)}')
        for k, r in enumerate(grp): a(f'v_pk_fma_f32 {p2r(T+2*k)}, {p2r(T+2*k)}, {p2r(C2)}, {p2r(C1)}')
        for k, r in enumerate(grp): a(f'v_pk_mul_f32 {p2r(T+2*k)}, {p2r(T+2*k)}, {p2r(r)}')
        for k in range(2*len(grp)): a(f'v_exp_f32 v{T+k}, v{T+k}')
        for k, r in enumerate(grp): a(f'v_pk_add_f32 {p2r(T+2*k)}, {p2r(T+2*k)}, 1.0 op_sel_hi:[1,0]')
        for k in range(2*len(grp)): a(f'v_rcp_f32 v{T+k}, v{T+k}')
        for k, r in enumerate(grp): a(f'v_pk_mul_f32 {p2r(r)}, {p2r(r)}, {p2r(T+2*k)}')

def gen(stamp=False, cfg={}):
    a = Asm()
    NJ = cfg.get('NJ', 8)
    names = []
    def ST_(name):
        if stamp and (name in cfg['stamps'] if 'stamps' in cfg else not name.startswith('x')):
            k = len(names); a(f'{cfg.get("clk", "s_memrealtime")} s[{72+2*k}:{73+2*k}]'); names.append(name)
    def srdc(d, size): a(f's_mov_b32 s{d+2}, {size}\ns_mov_b32 s{d+3}, 0x20000')
    def srd_off(d, off, size):
        a(f's_add_u32 s{d}, s8, {off}\ns_addc_u32 s{d+1}, s9, 0\ns_mov_b32 s{d+2}, {size}\ns_mov_b32 s{d+3}, 0x20000')
    def poll(tag, voff, soff, vt=15):
        a.bg_off()
        a(f's_mov_b32 s43, 0')
        a.label(f'{tag}_poll')
        a(f'''buffer_load_dword v{vt}, v{voff}, s[8:11], s{soff} offen sc1
        s_add_u32 s43, s43, 1
        s_waitcnt vmcnt(0)
        v_cmp_ne_u32 vcc, s4, v{vt}
        s_cmp_ge_u32 s43, {LIMIT}
        s_cbranch_scc1 {tag}_go
        s_cbranch_vccnz {tag}_poll''')
        a.label(f'{tag}_go')
    def flag(soff, vt=14):
        a(f'''v_mov_b32 v{vt}, 0
        v_mov_b32 v{vt+1}, s4
        s_mov_b64 exec, 1
        buffer_store_dword v{vt+1}, v{vt}, s[8:11], s{soff} offen sc1
        s_mov_b64 exec, -1''')

    a.raw('.amdgcn_target "amdgcn-amd-amdhsa--gfx950"\n.text')
    a.raw(f'.globl {KNAME}\n.p2align 8\n.type {KNAME},@function\n{KNAME}:')
    ST_('entry')
    a(f's_cmp_ge_u32 s2, 256\ns_cbranch_scc1 k_done')
    a('s_load_dwordx16 s[84:99], s[0:1], 0\ns_load_dwordx2 s[8:9], s[0:1], 80\ns_load_dwordx2 s[48:49], s[0:1], 64')
    NCS = cfg.get('ncs', 5)
    a('s_getpc_b64 s[44:45]')
    a.label('k_pc', flush=False)
    a(f'''s_add_u32 s44, s44, {KNAME}-k_pc
    s_addc_u32 s45, s45, -1
    s_lshr_b32 s35, s2, 3
    s_min_u32 s35, s35, {NCS-1}
    s_lshl_b32 s35, s35, 13
    v_lshrrev_b32 v4, 2, v0
    v_lshlrev_b32 v4, 7, v4
    v_add_u32 v4, s35, v4
    s_mov_b32 s36, 0x11111111
    s_lshr_b32 s35, s2, 3
    s_cmp_lt_u32 s35, {NCS}
    s_cselect_b32 exec_lo, s36, 1
    s_cselect_b32 exec_hi, s36, 0
    global_load_dword v255, v4, s[44:45]
    s_mov_b64 exec, -1''')
    a('''v_and_b32 v1, 63, v0
    v_and_b32 v2, 15, v0
    v_bfe_u32 v3, v0, 4, 2
    v_lshrrev_b32 v4, 6, v0
    v_readfirstlane_b32 s34, v4''')
    srdc(8, 0x10000000); srdc(16, 2048*1024); srdc(20, 2048*514); srdc(24, 2048*514); srdc(44, 512*2752)
    a(f'''s_and_b32 s35, s2, 7
    s_lshl_b32 s35, s35, 1
    s_lshr_b32 s36, s34, 1
    s_add_u32 s35, s35, s36
    s_bfe_u32 s36, s35, 0x10002
    s_lshl_b32 s36, s36, 4
    s_lshr_b32 s37, s35, 3
    s_lshl_b32 s37, s37, 2
    s_add_u32 s36, s36, s37
    s_and_b32 s37, s35, 3
    s_add_u32 s36, s36, s37
    s_and_b32 s37, s2, 8
    s_add_u32 s36, s36, s37
    s_lshr_b32 s37, s2, 4
    s_lshl_b32 s37, s37, 7
    s_add_u32 s36, s36, s37
    s_and_b32 s37, s34, 1
    s_lshl_b32 s37, s37, 6
    s_add_u32 s38, s36, s37
    s_lshl_b32 s39, s38, 10
    s_lshl_b32 s40, s34, 11
    v_lshlrev_b32 v240, 4, v1''')
    a(f'''s_lshr_b32 s41, s2, 6
    s_lshl_b32 s41, s41, 4
    s_and_b32 s42, s2, 15
    s_add_u32 s41, s41, s42
    s_and_b32 s42, s2, 16
    s_lshl_b32 s42, s42, 6
    s_add_u32 s41, s41, s42
    s_and_b32 s42, s2, 32
    s_lshl_b32 s42, s42, 3
    s_add_u32 s41, s41, s42
    s_mul_i32 s42, s41, 514
    v_lshlrev_b32 v5, 1, v0
    v_mov_b32 v6, 512
    v_cmp_eq_u32 vcc, 0, v0
    v_cndmask_b32 v5, v5, v6, vcc''')
    a(f'''s_lshr_b32 s35, s2, 3
    s_lshl_b32 s35, s35, 2
    s_add_u32 s35, s35, s34
    s_mul_i32 s35, s35, {4*2752}
    s_and_b32 s36, s2, 7
    s_mul_i32 s36, s36, 352
    s_add_u32 s5, s35, s36
    v_lshrrev_b32 v6, 2, v1
    v_mul_u32_u24 v6, 2752, v6
    v_and_b32 v7, 3, v1
    v_mul_u32_u24 v7, 116, v7
    v_add_u32 v6, v6, v7''')
    a('s_waitcnt lgkmcnt(0)')
    ST_('xkarg')
    NT = cfg.get('nt', ' nt')
    a(f'''s_mov_b32 s16, s84
    s_mov_b32 s17, s85
    s_mov_b32 m0, s40
    s_add_u32 s41, s39, {32768-1024}
    buffer_load_dwordx4 v240, s[16:19], s39 offen{NT} lds
    buffer_load_dwordx4 v240, s[16:19], s41 offen offset:1024{NT} lds''')
    xtag = a.vtag()
    a(f'''s_mov_b32 s20, s86
    s_mov_b32 s21, s87
    s_mov_b32 s24, s88
    s_mov_b32 s25, s89
    s_mov_b32 s6, {EP}
    s_load_dword s4, s[8:9], s6''')
    for e in range(8):
        a(f's_add_u32 s43, s42, {64*(8*(e>>2)+(e&3))*514}\nbuffer_load_ushort v{168+e}, v5, s[20:23], s43 offen{NT}\nbuffer_load_ushort v{176+e}, v5, s[24:27], s43 offen{NT}')
    wtag = a.vtag()
    a(f'''s_mov_b32 s44, s92
    s_mov_b32 s45, s93
    s_mov_b64 exec, 0xffff
    buffer_load_dword v254, v6, s[44:47], s5 offen{NT}
    s_mov_b64 exec, -1''')
    if NJ == 4:
        a('''s_bfe_u32 s56, s2, 0x20001
        s_lshl_b32 s56, s56, 3
        s_lshr_b32 s58, s2, 5
        s_add_u32 s56, s56, s58
        s_and_b32 s57, s2, 1
        s_lshl_b32 s57, s57, 2
        s_bfe_u32 s59, s2, 0x20003
        s_add_u32 s57, s57, s59
        s_lshl_b32 s59, s59, 1
        s_add_u32 s58, s58, s59
        s_lshl_b32 s58, s58, 1''')
    else:
        a('''s_and_b32 s56, s2, 7
        s_lshl_b32 s56, s56, 2
        s_lshr_b32 s58, s2, 6
        s_add_u32 s56, s56, s58
        s_bfe_u32 s57, s2, 0x30003
        s_lshl_b32 s58, s58, 1
        s_add_u32 s58, s58, s57
        s_lshl_b32 s58, s58, 1''')
    a('s_mov_b32 s12, s94\ns_mov_b32 s13, s95\ns_mov_b32 s52, s96\ns_mov_b32 s53, s97')
    srdc(12, 2048*4096); srdc(52, 4096); srdc(48, 2048*1024)
    V = dict(l16=240, wsp=241, wr=242)
    def wsp_addr():
        a(f'''v_lshlrev_b32 v6, 3, v3
        v_bfe_u32 v7, v1, 2, 2
        v_add_u32 v6, v6, v7
        v_lshlrev_b32 v{V["wsp"]}, 12, v6
        v_sub_u32 v6, 0, v3
        v_xor_b32 v6, v6, v1
        v_and_b32 v6, 3, v6
        v_lshl_add_u32 v{V["wsp"]}, v6, 4, v{V["wsp"]}
        v_sub_u32 v6, 0, v7
        v_xor_b32 v6, v6, v3
        v_and_b32 v6, 3, v6
        v_lshl_add_u32 v6, v2, 2, v6
        v_lshl_add_u32 v{V["wr"]}, v6, 4, s7''')
    a(f's_lshl_b32 s7, s34, 13\ns_add_u32 s7, s7, {L_WSP}')
    wsp_addr()
    a('s_lshl_b32 s35, s56, 18\ns_lshl_b32 s36, s34, 10\ns_add_u32 s35, s35, s36')
    for tau in range(4):
        a(f's_add_u32 s36, s34, {tau}\ns_and_b32 s37, s36, 2\ns_lshl_b32 s37, s37, 16\ns_and_b32 s36, s36, 1\ns_lshl_b32 s36, s36, 14\ns_add_u32 s36, s36, s37\ns_add_u32 s{60+tau}, s36, s35')
    for kp in range(8): a(f's_add_u32 s{64+kp}, s58, {2*kp}\ns_and_b32 s{64+kp}, s{64+kp}, 15\ns_lshl_b32 s{64+kp}, s{64+kp}, 10')
    own = 16 // NJ
    order = [(ks, tau) for tau in range(4) for ks in range(own)]
    order += [(ks, tau) for th in range(2) for kq in range(own, 16, 2) for tau in (2*th, 2*th+1) for ks in (kq, kq+1)]
    assert len(set(order)) == 64
    wv, wl = {}, {}
    WS = dict(S=8, k0=0)
    def w_dma(k):
        ks, tau = order[k]; S, k0 = WS['S'], WS['k0']
        fl_ = cfg.get('wsp_nt', ' nt') if k < 4*own else ''
        ops = []
        if k - S >= k0: ops.append((0.5, lambda: a.lwait(wl[k-S])))
        ops.append((2, lambda: a(f's_lshr_b32 s59, s{64+(ks>>1)}, 4\ns_add_u32 s59, s59, s{60+tau}')))
        ops.append((1, lambda: a(f's_add_u32 m0, s7, {1024*((k-k0)%S) - 64*(ks&1)}')))
        def ld():
            a(f'buffer_load_dwordx4 v{V["wsp"]}, s[12:15], s59 offen offset:{64*(ks&1)}{fl_} lds'); wv[k] = a.vtag()
        ops.append((1.5, ld))
        return ops
    def w_rd(k):
        ks, tau = order[k]; S, k0 = WS['S'], WS['k0']
        def rd():
            a.vwait(wv[k]); a(f'ds_read_b128 {q((ks*4+tau)*4, "a")}, v{V["wr"]} offset:{1024*((k-k0)%S)}'); wl[k] = a.ltag()
        return [(2, rd)]
    W = dict(d=0, r=0)
    def w_items(n, D):
        it = []
        for _ in range(n):
            ops = []
            while W['d'] - W['r'] >= D: ops += w_rd(W['r']); W['r'] += 1
            ops += w_dma(W['d']); W['d'] += 1
            it.append(ops)
        return it
    def w_flush():
        it = []
        while W['r'] < W['d']: it.append(w_rd(W['r'])); W['r'] += 1
        return it
    a.bg_set(w_items(cfg.get('nA', 4), 8), 0); a.bg_drain()
    def st_addr():
        a(f'''s_lshr_b32 s38, s34, 1
        s_lshl_b32 s36, s56, 1
        s_add_u32 s38, s38, s36
        s_lshl_b32 s39, s38, 12
        s_add_u32 s39, s39, {ST}
        s_and_b32 s40, s34, 1
        s_lshl_b32 s36, s57, 1
        s_add_u32 s36, s36, s40
        s_lshl_b32 s36, s36, 8
        s_add_u32 s36, s36, s39''')
    a('s_mov_b32 s33, s38')
    st_addr()
    a(f'v_mov_b32 v8, -1\nv_lshlrev_b32 v6, 2, v1\nbuffer_store_dword v8, v6, s[8:11], s36 offen sc1')
    a(f'''s_and_b32 s35, s2, 7
    s_mul_i32 s35, s35, 11
    s_lshr_b32 s36, s2, 3
    s_add_u32 s32, s35, s36
    s_cmp_lt_u32 s2, {B_WO}
    s_cbranch_scc0 k_r1''')
    a(f'''v_lshrrev_b32 v6, 1, v1
    v_lshrrev_b32 v7, 5, v1
    v_bfe_u32 v10, v1, 4, 1
    v_xor_b32 v10, v10, v1
    v_and_b32 v10, 1, v10
    v_lshlrev_b32 v10, 4, v10
    v_xor_b32 v11, v6, v7
    v_mul_u32_u24 v243, 2752, v11
    v_add_u32 v243, v243, v10
    v_xor_b32 v11, 2, v11
    v_mul_u32_u24 v244, 2752, v11
    v_add_u32 v244, v244, v10
    s_mul_i32 s5, s34, {128*2752}
    s_lshl_b32 s36, s32, 5
    s_add_u32 s5, s5, s36
    s_mov_b32 s6, {32*2752}
    s_branch k_r2''')
    a.label('k_r1')
    a(f'''s_mov_b32 s44, s98
    s_mov_b32 s45, s99
    s_sub_u32 s32, s2, {B_WO}
    s_cmp_lt_u32 s2, {B_QF}
    s_cselect_b32 s46, {688*1024}, 0
    v_lshrrev_b32 v6, 5, v1
    v_and_b32 v7, 31, v1
    v_lshlrev_b32 v7, 4, v7
    v_lshl_add_u32 v243, v6, 10, v7
    v_mov_b32 v244, v243
    s_lshr_b32 s5, s32, 1
    s_lshl_b32 s5, s5, 15
    s_and_b32 s36, s32, 1
    s_lshl_b32 s36, s36, 9
    s_add_u32 s5, s5, s36
    s_lshl_b32 s36, s34, 13
    s_add_u32 s5, s5, s36
    s_mov_b32 s6, 2048''')
    a.label('k_r2')
    T1, TC, TS, T3, T4, AF, AC = 16, 32, 40, 48, 52, 56, 72
    a(f'''v_cvt_f32_u32 v6, v2
    v_lshlrev_b32 v7, 2, v3
    v_cvt_f32_u32 v7, v7
    v_mul_f32 v8, {fl(1/32)}, v6
    v_mul_f32 v9, v7, v8''')
    for h in range(4):
        for j in range(2):
            e = 2*h + j; ce = 16*(e >> 2) + (e & 3)
            a(f'v_fmamk_f32 v{10+j}, v8, {fl(ce)}, v9')
        a('v_cos_f32 v12, v10\nv_cos_f32 v13, v11\nv_sin_f32 v14, v10\nv_sin_f32 v15, v11')
        a(f'v_cvt_pk_bf16_f32 v{T1+h}, v12, v13\nv_cvt_pk_bf16_f32 v{T1+8+h}, -v14, -v15')
        a(f'v_xor_b32 v{T1+4+h}, 0x80000000, v{T1+h}\nv_xor_b32 v{T1+12+h}, 0x80000000, v{T1+8+h}')
    for nt in range(2):
        if nt == 0: a(f'v_mul_f32 v8, {fl(1/512)}, v6')
        else: a(f'v_add_f32 v8, {fl(16/512)}, v8')
        a('v_mul_f32 v9, v7, v8')
        for i in range(4):
            if i: a(f'v_add_f32 v9, v9, v8')
            a(f'v_cos_f32 v{TC+4*nt+i}, v9\nv_sin_f32 v{TS+4*nt+i}, v9')
    a(f'''v_lshrrev_b32 v8, 1, v2
    v_cvt_f32_u32 v8, v8
    v_mul_f32 v8, {fl(1/16)}, v8
    v_and_b32 v9, 1, v2
    v_cvt_f32_u32 v9, v9
    v_mul_f32 v9, {fl(0.25)}, v9
    v_fmac_f32 v9, v7, v8''')
    for h in range(2):
        a('v_add_f32 v10, v9, v8')
        a('v_cos_f32 v12, v9\nv_cos_f32 v13, v10\nv_sin_f32 v14, v9\nv_sin_f32 v15, v10')
        a(f'v_cvt_pk_bf16_f32 v{T3+h}, v12, v13\nv_cvt_pk_bf16_f32 v{T3+2+h}, v14, v15')
        if h == 0: a('v_add_f32 v9, v10, v8')
    a(f'v_mov_b32 v{T4}, 0xbf803f80\nv_mov_b32 v{T4+1}, 0xbf803f80\nv_mov_b32 v{T4+2}, 0\nv_mov_b32 v{T4+3}, 0')
    TW, PK, A2, NY = 104, 120, 136, 152
    a(f'''s_mov_b64 s[28:29], 1
    v_lshlrev_b32 v4, 3, v1
    s_lshl_b32 s40, s34, 11
    v_add_u32 v4, s40, v4
    v_mov_b32 v5, 0x3f803f80
    v_cmp_eq_u32 s[30:31], 0, v2
    v_lshlrev_b32 v6, 6, v3
    v_add_u32 v6, v6, v2
    v_lshlrev_b32 v6, 6, v6
    s_lshl_b32 s40, s34, 3
    s_add_u32 s40, s40, {L_E1S}
    v_add_u32 v6, s40, v6
    v_lshlrev_b32 v7, 6, v0
    v_lshrrev_b32 v8, 1, v1
    s_and_b32 s40, s34, 1
    s_lshl_b32 s40, s40, 4
    s_lshr_b32 s41, s34, 1
    s_lshl_b32 s41, s41, 2
    s_add_u32 s40, s40, s41
    s_add_u32 s40, s40, {L_SIGS}
    v_add_u32 v8, s40, v8
    s_lshl_b32 s40, s34, 12
    v_add_u32 v9, s40, v240
    v_mov_b32 v14, {fl(-32.0)}
    v_cndmask_b32 v14, 0, v14, s[30:31]
    v_lshlrev_b32 v15, 3, v1
    s_lshl_b32 s42, s33, 2
    s_add_u32 s42, s42, {MX}
    s_lshl_b32 s41, s2, 14
    s_lshl_b32 s39, s34, 13
    s_lshl_b32 s36, s2, 5
    s_add_u32 s39, s39, s36
    s_add_u32 s39, s39, {SIG}
    s_lshl_b32 s38, s34, 8
    s_add_u32 s38, s38, s2
    s_lshl_b32 s38, s38, 6
    s_add_u32 s38, s38, {FL1}
    s_lshl_b32 s37, s34, 12
    s_add_u32 s37, s37, {L_RIN}''')
    ST_('xtabs')
    a.vwait(xtag)
    ST_('xdata')
    for R in range(2):
        a(f'ds_read_b64_tr_b16 v[{AF+4*R}:{AF+4*R+1}], v4 offset:{1024*R}\nds_read_b64_tr_b16 v[{AF+4*R+2}:{AF+4*R+3}], v4 offset:{1024*R+512}')
    for p in range(4):
        a(f's_add_u32 m0, s37, {1024*p}\ns_nop 0\nbuffer_load_dwordx4 v{243+(p&1)}, s[44:47], s5 offen lds\ns_add_u32 s5, s5, s6')
    rtag = a.vtag()
    a('s_waitcnt lgkmcnt(0)')
    a(f's_add_u32 s4, s4, 0x9e3779b1')
    for tl in range(4):
        for R in range(2):
            r = AF + 4*R + tl
            a(f'v_dot2_f32_bf16 v{10+R}, v{r}, v5, {"0" if tl == 0 else f"v{10+R}"}')
            a(f'v_dot2_f32_bf16 v{12+R}, v{r}, v{r}, {"0" if tl == 0 else f"v{12+R}"}')
    red = ['v_permlane32_swap_b32 v10, v12', 'v_permlane32_swap_b32 v11, v13', 'v_add_f32 v10, v10, v12', 'v_add_f32 v11, v11, v13', None,
           'v_permlane16_swap_b32 v10, v11', 'v_add_f32 v10, v10, v11', None]
    for R in range(2):
        for tl in range(4):
            a(f'{MF} {q(AC+16*R+4*tl)}, {q(AF+4*R)}, {q(T1+4*tl)}, 0')
            x = red.pop(0)
            if x: a(x)
    for s in (8, 4, 2, 1): a(f'v_add_f32_dpp v10, v10, v10 row_ror:{s} row_mask:0xf bank_mask:0xf')
    a(f'''v_mul_f32 v10, {fl(1/512)}, v10
    v_mov_b32 v11, v10
    v_permlane32_swap_b32 v10, v11
    v_readlane_b32 s24, v10, 0
    v_readlane_b32 s25, v10, 16
    v_fma_f32 v11, -v10, v10, v11
    v_max_f32 v11, 0, v11
    v_add_f32 v11, {fl(1e-5)}, v11
    v_rsq_f32 v12, v11
    v_sqrt_f32 v13, v11''')
    for R in range(2):
        for i in range(4): a(f'v_fmac_f32 v{AC+16*R+i}, s{24+R}, v14')
    a(f'v_mul_f32 v12, {fl(1/16)}, v12')
    a(f'''s_mov_b64 exec, 0x10001
    ds_write_b32 v8, v13
    buffer_store_dword v10, v15, s[8:11], s42 offen sc1
    s_mov_b64 exec, -1
    v_readlane_b32 s20, v12, 0
    v_readlane_b32 s22, v12, 16''')
    for R in range(2):
        cmul(a, TW, TW+8, AC+16*R, AC+16*R+8, TC, TS, True)
        for nt in range(2):
            p = PK + 8*R + 4*nt
            for h in range(2): a(f'v_cvt_pk_bf16_f32 v{p+h}, v{TW+4*nt+2*h}, v{TW+4*nt+2*h+1}\nv_cvt_pk_bf16_f32 v{p+2+h}, v{TW+8+4*nt+2*h}, v{TW+8+4*nt+2*h+1}')
        for nt in range(2): a(f'{MF} {q(A2+8*R+4*nt)}, {q(T3)}, {q(PK+8*R+4*nt)}, 0')
        a(f'{MF} {q(NY+4*R)}, {q(T4)}, {q(PK+8*R)}, 0')
    a.vwait(wtag)
    for e in range(8): a(f'v_lshl_or_b32 v{168+e}, v{176+e}, 16, v{168+e}')
    a(f'ds_write_b128 v7, v[168:171] offset:{L_E1S+32}\nds_write_b128 v7, v[172:175] offset:{L_E1S+48}')
    for R in range(2):
        a(f'v_mul_f32 v{NY+4*R}, {fl(math.sqrt(0.5))}, v{NY+4*R}')
        a(f'v_cndmask_b32 v{A2+8*R}, v{A2+8*R}, v{NY+4*R}, s[28:29]')
        a(f'v_cndmask_b32 v{A2+8*R+1}, v{A2+8*R+1}, 0, s[28:29]')
        for k in range(4):
            r = A2 + 8*R + 2*k
            a(f'v_pk_mul_f32 {p2r(r)}, {p2r(r)}, s[{20+2*R}:{21+2*R}] op_sel_hi:[1,0]')
        for k in range(4):
            r = A2 + 8*R + 2*k
            a(f'v_cvt_pk_bf16_f32 v{TW+2*k+R}, v{r}, v{r+1}')
    for k in range(4):
        nt, h = k >> 1, k & 1
        a(f'ds_write_b64 v6, {p2r(TW+2*k)} offset:{(16*nt+32*h)*64}')
    a.vwait(rtag)
    a('s_waitcnt lgkmcnt(0)\ns_barrier')
    for p in range(4): a(f'ds_read_b128 {q(168+4*p)}, v9 offset:{L_E1S+1024*p}')
    a(f'ds_read_b128 {q(184)}, v240 offset:{L_SIGS}')
    for p in range(4):
        a(f's_waitcnt lgkmcnt({4-p})\nbuffer_store_dwordx4 {q(168+4*p)}, v9, s[8:11], s41 offen offset:{1024*p} sc1')
    a(f's_waitcnt lgkmcnt(0)\ns_mov_b64 exec, 3\nbuffer_store_dwordx4 {q(184)}, v240, s[8:11], s39 offen sc1\ns_mov_b64 exec, -1')
    e1tag = a.vtag()
    ST_('e1st')
    a.bg_set(w_items(cfg.get('nB', 4), 8), 0); a.bg_drain()
    nv0 = a.nvm
    a(f's_cmp_lt_u32 s2, {B_WO}\ns_cbranch_scc0 k_a1')
    a(f'''v_bfe_u32 v4, v1, 2, 2
    v_and_b32 v5, 3, v1
    v_lshrrev_b32 v8, 2, v1
    v_lshlrev_b32 v8, 4, v8
    v_lshl_add_u32 v8, v5, 2, v8
    v_add_u32 v8, v8, v4
    v_lshlrev_b32 v8, 5, v8
    v_lshrrev_b32 v5, 1, v5
    s_lshr_b32 s40, s34, 1
    v_xor_b32 v5, s40, v5
    v_lshl_add_u32 v8, v5, 4, v8
    s_and_b32 s40, s34, 1
    s_lshl_b32 s40, s40, 3
    s_add_u32 s40, s40, {L_RIN}
    v_add_u32 v8, s40, v8
    v_xor_b32 v9, 32, v8
    v_xor_b32 v10, 64, v8
    v_xor_b32 v11, 96, v8''')
    for db in range(4):
        a(f'ds_read_b64_tr_b16 v[{AF+4*db}:{AF+4*db+1}], v{8+db}\nds_read_b64_tr_b16 v[{AF+4*db+2}:{AF+4*db+3}], v{8+db} offset:8192')
    for db in range(4):
        a(f's_waitcnt lgkmcnt({6-2*db})')
        for tl in range(4): a(f'{MF} {q(AC+16*db+4*tl)}, {q(AF+4*db)}, {q(T1+4*tl)}, 0')
    a(f'''v_lshlrev_b32 v4, 12, v3
    v_bfe_u32 v5, v2, 1, 2
    v_lshl_add_u32 v4, v5, 8, v4
    v_lshrrev_b32 v5, 3, v2
    v_lshl_add_u32 v4, v5, 3, v4
    v_and_b32 v5, 1, v2
    v_lshl_add_u32 v4, v5, 2, v4
    s_lshl_b32 s40, s34, 6
    s_add_u32 s40, s40, {L_ROUT}
    v_add_u32 v4, s40, v4
    s_mov_b32 s20, {fl(1/16)}''')
    TW2 = 136
    o2 = lambda nt, f: AC + 16*f + 4*nt
    ny = lambda f: AC + 16*f + 8
    for nt in range(2):
        for db in range(4):
            re, im = AC+16*db+4*nt, AC+16*db+8+4*nt
            t = TW2 + 8*db
            cb, sb = (TC+4*nt+db) & ~1, (TS+4*nt+db) & ~1
            sel2 = 'op_sel:[0,1] op_sel_hi:[1,1]' if db & 1 else 'op_sel_hi:[1,0]'
            sel3 = 'op_sel:[0,1,0] op_sel_hi:[1,1,1]' if db & 1 else 'op_sel_hi:[1,0,1]'
            for h in (0, 2):
                a(f'v_pk_mul_f32 {p2r(t+h)}, {p2r(re+h)}, {p2r(cb)} {sel2}')
                a(f'v_pk_mul_f32 {p2r(t+4+h)}, {p2r(im+h)}, {p2r(cb)} {sel2}')
                a(f'v_pk_fma_f32 {p2r(t+h)}, {p2r(im+h)}, {p2r(sb)}, {p2r(t+h)} {sel3}')
                a(f'v_pk_fma_f32 {p2r(t+4+h)}, {p2r(re+h)}, {p2r(sb)}, {p2r(t+4+h)} {sel3}{NEG1}')
        for f in range(4):
            p = AF + 4*f
            a(f'v_cvt_pk_bf16_f32 v{p}, v{TW2+f}, v{TW2+8+f}\nv_cvt_pk_bf16_f32 v{p+1}, v{TW2+16+f}, v{TW2+24+f}')
            a(f'v_cvt_pk_bf16_f32 v{p+2}, v{TW2+4+f}, v{TW2+12+f}\nv_cvt_pk_bf16_f32 v{p+3}, v{TW2+20+f}, v{TW2+28+f}')
        for f in range(4):
            p = AF + 4*f
            a(f'{MF} {q(o2(nt,f))}, {q(T3)}, {q(p)}, 0')
            if nt == 0: a(f'{MF} {q(ny(f))}, {q(T4)}, {q(p)}, 0')
        if nt == 0:
            a.vwait(e1tag); flag(38)
    for f in range(4):
        a(f'v_mul_f32 v{ny(f)}, {fl(math.sqrt(0.5))}, v{ny(f)}')
        a(f'v_cndmask_b32 v{o2(0,f)}, v{o2(0,f)}, v{ny(f)}, s[28:29]')
    for nt in range(2):
        for f in range(4):
            for h in range(2):
                r = o2(nt, f) + 2*h
                a(f'v_pk_mul_f32 {p2r(r)}, {p2r(r)}, s[20:21] op_sel_hi:[1,0]')
                a(f'v_cvt_pk_bf16_f32 v{r}, v{r}, v{r+1}')
                a(f'ds_write_b32 v4, v{r} offset:{(nt+2*h)*1024 + 16*f}')
    srd_off(16, W1, 2*WPB)
    a(f'''s_lshl_b32 s40, s34, 12
    v_add_u32 v9, s40, v240
    s_lshl_b32 s41, s32, 14
    s_waitcnt lgkmcnt(0)
    s_barrier''')
    for p in range(4): a(f'ds_read_b128 {q(168+4*p)}, v9 offset:{L_ROUT+1024*p}')
    for p in range(4): a(f's_waitcnt lgkmcnt({3-p})\nbuffer_store_dwordx4 {q(168+4*p)}, v9, s[16:19], s41 offen offset:{1024*p} sc1')
    a('s_branch k_a9')
    assert a.nvm == nv0 + 5; a.nvm = nv0
    a.label('k_a1')
    a(f's_cmp_lt_u32 s2, {B_QF}\ns_cbranch_scc0 k_a2')
    a(f'''v_lshrrev_b32 v8, 2, v1
    v_lshlrev_b32 v8, 9, v8
    v_and_b32 v5, 3, v1
    v_lshl_add_u32 v8, v5, 5, v8
    s_lshl_b32 s40, s34, 7
    s_add_u32 s40, s40, {L_RIN}
    v_add_u32 v8, s40, v8
    s_and_b32 s40, s32, 1
    s_lshl_b32 s40, s40, 2
    s_add_u32 s40, s40, s34
    s_mul_i32 s40, s40, 90112
    s_lshr_b32 s41, s32, 1
    s_lshl_b32 s41, s41, 10
    s_add_u32 s41, s41, s40
    s_add_u32 s41, s41, {WO}''')
    for mb in range(4):
        a(f'ds_read_b64_tr_b16 v[{168+4*mb}:{169+4*mb}], v8 offset:{8*mb}\nds_read_b64_tr_b16 v[{170+4*mb}:{171+4*mb}], v8 offset:{8*mb+8192}')
    for mb in range(4):
        a(f's_waitcnt lgkmcnt({6-2*mb})\nbuffer_store_dwordx4 {q(168+4*mb)}, v240, s[8:11], s41 offen sc1\ns_add_u32 s41, s41, 22528')
    a.vwait(e1tag); flag(38)
    a('s_branch k_a9')
    assert a.nvm == nv0 + 5; a.nvm = nv0
    a.label('k_a2')
    srd_off(16, QF, 512*1024)
    a(f'''s_sub_u32 s35, s2, {B_QF}
    s_lshr_b32 s40, s35, 3
    s_lshl_b32 s40, s40, 6
    s_and_b32 s41, s35, 6
    s_lshl_b32 s41, s41, 1
    s_add_u32 s40, s40, s41
    v_lshrrev_b32 v4, 2, v2
    v_lshlrev_b32 v4, 4, v4
    v_and_b32 v5, 3, v2
    v_add3_u32 v4, v4, v5, s40
    s_and_b32 s41, s35, 1
    s_lshl_b32 s41, s41, 2
    s_add_u32 s41, s41, s34
    s_lshl_b32 s42, s41, 5
    v_lshl_add_u32 v5, v3, 1, s42
    s_lshl_b32 s41, s34, 11
    s_lshl_b32 s42, s35, 13
    s_add_u32 s42, s42, s41
    v_mov_b32 v13, {fl(1/16)}
    v_mov_b32 v10, 256
    v_mov_b32 v11, {fl(math.sqrt(1/512))}
    v_cmp_eq_u32 vcc, 0, v5''')
    for kk in range(2):
        for h in range(4):
            cc = 16*kk + 8*(h >> 1) + (h & 1)
            a(f'v_add_u32 v7, {cc}, v5')
            sc = 'v13'
            if cc == 0:
                a('v_cndmask_b32 v7, v7, v10, vcc\nv_cndmask_b32 v12, v13, v11, vcc'); sc = 'v12'
            a(f'''v_mul_u32_u24 v7, v7, v4
            v_and_b32 v7, 511, v7
            v_cvt_f32_u32 v7, v7
            v_mul_f32 v7, {fl(1/512)}, v7
            v_cos_f32 v8, v7
            v_sin_f32 v9, v7
            v_mul_f32 v8, v8, {sc}
            v_mul_f32 v9, v9, {sc}
            v_cvt_pk_bf16_f32 v{168+4*kk+h}, v8, -v9''')
        a(f'buffer_store_dwordx4 {q(168+4*kk)}, v240, s[16:19], s42 offen offset:{1024*kk} sc1')
    a.vwait(e1tag); flag(38)
    a.nvm = nv0 + 3
    a.label('k_a9')
    auxtag = a.vtag()
    ST_('xaux')
    BRE, BIM, FC, FS, FN = 16, 32, 48, 56, 64
    TAC, TAS, TBC, TBS, SELR, SELI = 72, 80, 88, 96, 104, 108
    AF, WP, WR, WI, SG, UR, UI, XR, XI, YR, YI, PR, PI = 112, 144, 152, 160, 168, 176, 184, 192, 200, 208, 216, 224, 228
    D = cfg.get('D', 7)
    a.bg_set(w_items(cfg.get('nC', 12), D), cfg.get('bg_c', 72), cfg.get('delay_c', 0))
    a('''s_lshl_b32 s35, s34, 4
    v_add_u32 v6, s35, v2
    v_cvt_f32_u32 v6, v6
    v_lshlrev_b32 v7, 2, v3
    v_cvt_f32_u32 v7, v7
    v_and_b32 v8, 1, v3
    v_lshlrev_b32 v8, 4, v8
    v_lshrrev_b32 v4, 1, v3
    v_lshl_add_u32 v8, v4, 2, v8
    v_cvt_f32_u32 v8, v8
    v_bfe_u32 v5, v2, 2, 1
    v_lshlrev_b32 v5, 4, v5
    v_lshrrev_b32 v4, 3, v2
    v_lshl_add_u32 v5, v4, 2, v5
    v_and_b32 v4, 3, v2
    v_add_u32 v5, v5, v4
    v_cvt_f32_u32 v9, v5''')
    a(f'v_mul_f32 v10, {fl(1/64)}, v6\nv_cvt_f32_u32 v12, s35\nv_add_f32 v12, v12, v7\nv_mul_f32 v12, v12, v10\nv_and_b32 v4, 1, v2\nv_mov_b32 v5, 0x80008000\nv_mul_lo_u32 v4, v4, v5')
    for tau in range(2):
        for i in range(4):
            a(f'v_fmamk_f32 v11, v10, {fl(16*tau+i)}, v12\nv_cos_f32 v13, v11\nv_sin_f32 v14, v11')
            a(f'v_cvt_pk_bf16_f32 v{BRE+4*tau+i}, v13, v14\nv_cvt_pk_bf16_f32 v{BIM+4*tau+i}, -v14, v13')
            a(f'v_xor_b32 v{BRE+8+4*tau+i}, v4, v{BRE+4*tau+i}\nv_xor_b32 v{BIM+8+4*tau+i}, v4, v{BIM+4*tau+i}')
    a(f'v_lshlrev_b32 v4, 2, v3\nv_sub_u32 v4, v2, v4\nv_mov_b32 v13, 0x3f80')
    for i in range(4):
        a(f'v_cmp_eq_u32 vcc, {i}, v4\nv_cndmask_b32 v{SELR+i}, 0, v13, vcc\nv_lshlrev_b32 v{SELI+i}, 16, v{SELR+i}')
    a(f'v_mul_f32 v10, {fl(1/2048)}, v6\nv_mul_f32 v11, v8, v10')
    for e in range(8):
        a(f'v_fmamk_f32 v12, v10, {fl(8*(e>>2)+(e&3))}, v11\nv_cos_f32 v{TAC+e}, v12\nv_sin_f32 v{TAS+e}, v12')
    a(f'v_mul_f32 v10, {fl(1/32)}, v9\nv_mul_f32 v11, v8, v10')
    for h in range(4):
        for j in range(2):
            e = 2*h + j
            a(f'v_fmamk_f32 v{12+j}, v10, {fl(8*(e>>2)+(e&3))}, v11')
        a('v_cos_f32 v14, v12\nv_cos_f32 v15, v13\nv_sin_f32 v12, v12\nv_sin_f32 v13, v13')
        sg = '-' if h & 1 else ''; ng = '' if h & 1 else '-'
        a(f'v_cvt_pk_bf16_f32 v{FC+h}, v14, v15\nv_cvt_pk_bf16_f32 v{FS+h}, v12, v13')
        a(f'v_cvt_pk_bf16_f32 v{FC+4+h}, {sg}v14, {ng}v13\nv_cvt_pk_bf16_f32 v{FS+4+h}, {sg}v12, {sg}v15')
        a(f'v_xor_b32 v{FN+h}, v5, v{FS+h}\nv_xor_b32 v{FN+4+h}, v5, v{FS+4+h}')
    a('v_cvt_f32_u32 v13, s35\nv_add_f32 v13, v13, v7')
    for t in range(2):
        if t == 0: a(f'v_mul_f32 v10, {fl(1/2048)}, v9')
        else: a(f'v_add_f32 v10, {fl(8/2048)}, v10')
        a('v_mul_f32 v12, v13, v10')
        for i in range(4):
            if i: a('v_add_f32 v12, v12, v10')
            a(f'v_cos_f32 v{TBC+4*t+i}, v12\nv_sin_f32 v{TBS+4*t+i}, v12')
    a(f'''s_sub_u32 s36, s32, 43
    s_cmp_lt_u32 s2, {B_WO}
    s_cselect_b32 s37, s36, 47
    s_lshl_b32 s36, s36, 2
    s_add_u32 s36, s36, s34
    s_lshl_b32 s36, s36, 6
    s_add_u32 s36, s36, {FLW}
    s_cmp_lt_u32 s37, 43
    s_cselect_b32 s36, s36, s10''')
    a.vwait(auxtag); flag(36)
    srd_off(16, W1, WPB); srd_off(20, W2, WPB); srd_off(24, Z2N, 43*65536); srd_off(28, PF, 22*131072)
    a(f'''s_and_b32 s3, s2, 7
    s_lshl_b32 s3, s3, 5
    s_lshr_b32 s36, s2, 3
    s_add_u32 s3, s3, s36
    v_lshlrev_b32 v4, 6, v1
    s_lshr_b32 s36, s3, 6
    s_lshl_b32 s37, s36, 14
    s_lshl_b32 s38, s34, 12
    s_add_u32 s37, s37, s38
    s_add_u32 s37, s37, {FL1}
    s_lshl_b32 s39, s36, 13
    s_lshl_b32 s40, s34, 11
    s_add_u32 s39, s39, s40
    s_add_u32 s39, s39, {SIG}
    s_add_u32 s40, s40, {L_SIG}
    s_add_u32 s38, s38, {L_GAT}
    s_lshl_b32 s41, s34, 20
    s_lshl_b32 s42, s3, 6
    s_add_u32 s41, s41, s42
    v_lshrrev_b32 v5, 2, v1
    v_lshlrev_b32 v5, 14, v5
    v_and_b32 v6, 1, v3
    v_lshlrev_b32 v6, 1, v6
    v_xor_b32 v6, v6, v1
    v_and_b32 v6, 3, v6
    v_lshl_add_u32 v5, v6, 4, v5''')
    a(f'''v_lshrrev_b32 v6, 1, v2
    v_lshl_add_u32 v6, v3, 4, v6
    v_lshlrev_b32 v6, 6, v6
    v_lshrrev_b32 v7, 3, v2
    v_lshlrev_b32 v7, 1, v7
    v_and_b32 v8, 1, v2
    v_or_b32 v7, v7, v8
    v_lshl_add_u32 v6, v7, 4, v6''')
    for tau in range(4):
        a(f's_add_u32 s36, s34, {tau}\ns_and_b32 s36, s36, 3\ns_lshl_b32 s42, s36, 12\ns_add_u32 s42, s42, {L_GAT}\nv_add_u32 v{232+tau}, s42, v6\ns_lshl_b32 s42, s36, 11\ns_add_u32 s42, s42, {L_EXCH}\nv_add_u32 v{236+tau}, s42, v240')
    a(f'''v_bfe_u32 v7, v2, 2, 1
    v_xor_b32 v7, 1, v7
    v_lshl_add_u32 v7, v7, 5, v4
    v_add_u32 v7, s38, v7
    v_lshrrev_b32 v8, 2, v2
    v_lshlrev_b32 v8, 9, v8
    v_lshl_add_u32 v8, v3, 6, v8
    v_and_b32 v9, 3, v2
    v_lshl_add_u32 v8, v9, 3, v8
    v_add_u32 v8, s40, v8
    v_lshlrev_b32 v9, 6, v2
    v_lshl_add_u32 v9, v3, 4, v9''')
    a(f'''v_lshrrev_b32 v10, 2, v1
    v_min_u32 v10, 5, v10
    s_mul_i32 s36, s57, 6
    v_add_u32 v10, s36, v10
    v_min_u32 v10, 42, v10
    v_and_b32 v11, 3, v1
    v_lshl_add_u32 v10, v10, 2, v11
    v_lshlrev_b32 v10, 6, v10
    s_mov_b32 s5, {FLW}''')
    a.bg_drain()
    ST_('xpre1')
    poll('e1', 4, 37)
    ST_('e1rdy')
    for p in range(4):
        a(f's_add_u32 m0, s38, {1024*p}\ns_add_u32 s42, s41, {p*262144}\nbuffer_load_dwordx4 v5, s[8:11], s42 offen sc1 lds')
    gtag = a.vtag()
    a(f's_mov_b32 m0, s40\ns_nop 0\nbuffer_load_dwordx4 v240, s[8:11], s39 offen sc1 lds\nbuffer_load_dwordx4 v240, s[8:11], s39 offen offset:1024 sc1 lds')
    stag = a.vtag()
    a(f'buffer_load_dword v11, v10, s[8:11], s5 offen sc1')
    a(f'''s_or_b32 s36, s2, s34
    s_cmp_eq_u32 s36, 0
    s_cselect_b32 s36, {EP}, s10''')
    a(f'''s_lshl_b32 s37, s3, 13
    s_lshl_b32 s42, s34, 10
    s_add_u32 s37, s37, s42
    s_add_u32 s37, s37, {HT}
    s_add_u32 s39, s37, 4096
    s_mov_b32 s40, {fl(1/2048)}
    s_cmp_eq_u32 s3, 0
    s_cselect_b32 s44, 0, {fl(-1/2048)}''')
    def dma_items(srdreg, n, tile_bytes, ldsbase, extra=0):
        a(f's_mul_i32 s46, s57, {tile_bytes}\ns_mul_i32 s47, s34, {n*1024}\ns_add_u32 s46, s46, s47')
        if extra: a(f's_add_u32 s46, s46, {extra}')
        if ldsbase: a(f's_add_u32 s47, s47, {ldsbase}')
        st = {}
        def mk(k):
            kb, ko = k & ~3, k & 3
            def ld():
                a(f'buffer_load_dwordx4 v{V["l16"]}, s[{srdreg}:{srdreg+3}], s59 offen offset:{1024*ko} sc1 lds'); st['tag'] = a.vtag()
            return [(2, lambda: a(f's_add_u32 m0, s47, {1024*kb}\ns_add_u32 s59, s46, {1024*kb}')), (1.5, ld)]
        return [mk(k) for k in range(n)], st
    iW2, sW2 = dma_items(20, 24, 98304, LX)
    a.vwait(gtag); a('s_barrier')
    ST_('xgat')
    lt = {}
    for tau in range(4):
        for t in range(2):
            a(f'ds_read_b128 {q(AF+8*tau+4*t)}, v{232+tau} offset:{512*t}'); lt[(tau, t)] = a.ltag()
    a(f'ds_read_b128 {q(WP)}, v7\nds_read_b128 {q(WP+4)}, v7 offset:16'); wlt = a.ltag()
    a(f's_waitcnt vmcnt(0)\nv_cmp_ne_u32 vcc, s4, v11\ns_cbranch_vccz w2_go')
    poll('w2', 10, 5, 11)
    for k in range(4): a(f'ds_read_b64 {p2r(SG+2*k)}, v8 offset:{256*(k>>1)+32*(k&1)}')
    slt = a.ltag()
    n2 = cfg.get('nD', 0)
    a.bg_set(iW2 + w_items(n2, D), cfg.get('bg_p2', 72))
    for tau in range(4):
        for t in range(2):
            a.lwait(lt[(tau, t)])
            A = q(AF+8*tau+4*t)
            a(f'{MF} {q(XR+4*t)}, {A}, {q(BRE+4*tau)}, {"0" if tau==0 else q(XR+4*t)}')
            a(f'{MF} {q(XI+4*t)}, {A}, {q(BIM+4*tau)}, {"0" if tau==0 else q(XI+4*t)}')
    for t in range(2):
        a(f'{MF} {q(UR+4*t)}, {q(AF+4*t)}, {q(SELR)}, 0\n{MF} {q(UI+4*t)}, {q(AF+4*t)}, {q(SELI)}, 0')
    a.lwait(wlt)
    for e in range(3): a(f'v_lshlrev_b32 v{WR+e}, 16, v{WP+e}\nv_and_b32 v{WI+e}, 0xffff0000, v{WP+e}')
    cmul(a, YR, YI, XR, XI, TAC, TAS, True)
    pack8(a, PR, YR); pack8(a, PI, YI)
    for t in range(2): a(f'{MF} {q(XR+4*t)}, {q(FC+4*t)}, {q(PR)}, 0\n{MF} {q(XI+4*t)}, {q(FN+4*t)}, {q(PR)}, 0')
    for t in range(2): a(f'{MF} {q(XR+4*t)}, {q(FS+4*t)}, {q(PI)}, {q(XR+4*t)}\n{MF} {q(XI+4*t)}, {q(FC+4*t)}, {q(PI)}, {q(XI+4*t)}')
    for e in range(3, 8): a(f'v_lshlrev_b32 v{WR+e}, 16, v{WP+e}\nv_and_b32 v{WI+e}, 0xffff0000, v{WP+e}')
    cmul(a, YR, YI, XR, XI, WR, WI, False)
    pack8(a, PR, YR); pack8(a, PI, YI)
    for t in range(2): a(f'{MF} {q(XR+4*t)}, {q(PR)}, {q(FC+4*t)}, 0\n{MF} {q(XI+4*t)}, {q(PR)}, {q(FS+4*t)}, 0')
    for t in range(2): a(f'{MF} {q(XR+4*t)}, {q(PI)}, {q(FN+4*t)}, {q(XR+4*t)}\n{MF} {q(XI+4*t)}, {q(PI)}, {q(FC+4*t)}, {q(XI+4*t)}')
    a.lwait(slt)
    for h in range(8): a(f'v_mul_f32 v{UR+h}, v{UR+h}, v{SG+h}')
    cmul(a, YR, YI, XR, XI, TBC, TBS, False)
    for t in range(2):
        for i in range(4): a(f'v_cvt_pk_bf16_f32 v{AF+4*t+i}, v{YR+4*t+i}, -v{YI+4*t+i}')
        a(f'ds_write_b128 v236, {q(AF+4*t)} offset:{1024*t}')
    for t in range(2): a(f'{MF} {q(XR+4*t)}, {q(AF+4*t)}, {q(BRE)}, 0\n{MF} {q(XI+4*t)}, {q(AF+4*t)}, {q(BIM)}, 0')
    if not cfg.get('bg_st4', 0): a.bg_off()
    a('s_waitcnt lgkmcnt(0)\ns_barrier')
    for tau in range(1, 4):
        for t in range(2):
            a(f'ds_read_b128 {q(AF+8*tau+4*t)}, v{236+tau} offset:{1024*t}'); lt[(tau, t)] = a.ltag0
    for h in range(8): a(f'v_mul_f32 v{UI+h}, v{UI+h}, v{SG+h}')
    for tau in range(1, 4):
        for t in range(2):
            a.lwait(lt[(tau, t)])
            A = q(AF+8*tau+4*t)
            a(f'{MF} {q(XR+4*t)}, {A}, {q(BRE+4*tau)}, {q(XR+4*t)}\n{MF} {q(XI+4*t)}, {A}, {q(BIM+4*tau)}, {q(XI+4*t)}')
    a.bg_off()
    for h in range(0, 8, 2): a(f'v_pk_fma_f32 {p2r(UR+h)}, {p2r(XR+h)}, s[40:41], {p2r(UR+h)} op_sel_hi:[1,0,1]')
    pack8(a, PR, UR)
    a(f'buffer_store_dwordx4 {q(PR)}, v9, s[8:11], s37 offen sc1')
    for h in range(0, 8, 2): a(f'v_pk_fma_f32 {p2r(UI+h)}, {p2r(XI+h)}, s[44:45], {p2r(UI+h)} op_sel_hi:[1,0,1]')
    pack8(a, PI, UI)
    a(f'buffer_store_dwordx4 {q(PI)}, v9, s[8:11], s39 offen sc1')
    httag = a.vtag()
    ST_('p2end')
    flag(36)
    a(f'''s_lshl_b32 s36, s34, 8
    s_add_u32 s36, s36, s3
    s_lshl_b32 s36, s36, 6
    s_add_u32 s36, s36, {FLH}
    v_mov_b32 v0, v240
    v_mov_b32 v5, v241
    v_mov_b32 v6, v242''')
    V.update(l16=0, wsp=5, wr=6)
    print('bg left at p2end', len(a.bgq), 'wsp issued', W['d'], file=sys.stderr)
    NE = cfg.get('early', 48)
    a.bg_set(w_items(NE - W['d'], D) + w_flush(), 0)
    a.bg_drain(cfg.get('pre_flag', 10))
    a.vwait(httag)
    flag(36)
    ST_('xhflag')
    a.bg_drain(cfg.get('post_flag', 6))
    assert 'tag' in sW2 and not any(x in a.bgq for x in iW2)
    a.vwait(sW2['tag'])
    a('s_barrier')
    a.bg_int = cfg.get('bg_cp', 16)
    B2 = 64
    a(f's_and_b32 s36, s34, 1\ns_mul_i32 s36, s36, 49152\nv_add_u32 v4, s36, v0')
    for k in range(48): a(f'ds_read_b128 {q(B2+4*k)}, v4 offset:{1024*k}')
    a(f'''v_lshrrev_b32 v7, 3, v1
    v_lshlrev_b32 v7, 12, v7
    v_and_b32 v8, 7, v1
    v_lshlrev_b32 v9, 1, v3
    v_xor_b32 v8, v8, v9
    v_lshl_add_u32 v7, v8, 4, v7
    v_lshlrev_b32 v8, 6, v3
    v_add_u32 v8, v8, v2
    v_lshlrev_b32 v8, 6, v8
    s_lshr_b32 s36, s56, 3
    s_lshl_b32 s36, s36, 14
    s_lshl_b32 s37, s34, 10
    s_add_u32 s36, s36, s37
    s_add_u32 s36, s36, {FLH}''')
    a(f'''v_lshrrev_b32 v9, 2, v1
    v_lshlrev_b32 v9, 7, v9
    v_and_b32 v10, 3, v1
    v_lshl_add_u32 v9, v10, 3, v9
    v_add_u32 v9, {LY}, v9
    v_bfe_u32 v10, v1, 3, 2
    v_xor_b32 v11, s34, v10
    v_lshl_add_u32 v11, v11, 5, v9
    s_and_b32 s37, s34, 2
    v_xor_b32 v10, s37, v10
    v_lshl_add_u32 v9, v10, 5, v9
    v_xor_b32 v10, 32, v9''')
    a(f'''s_lshl_b32 s38, s34, 17
    s_lshl_b32 s37, s56, 7
    s_add_u32 s38, s38, s37
    s_add_u32 s38, s38, {HT}
    s_lshl_b32 s39, s34, 12
    s_add_u32 s39, s39, {LY}''')
    a(f'''s_mov_b32 s40, 0xaaaaaaaa
    s_mov_b32 s41, 0xaaaaaaaa
    s_mov_b32 s44, 0xcccccccc
    s_mov_b32 s45, 0xcccccccc
    s_mov_b32 s32, 0x00f0000f
    s_mov_b32 s33, 0xf0000f00''')
    a.bg_off(); a.bg_drain()
    iW1, sW1 = dma_items(16, 24, 98304, LX)
    a('s_waitcnt lgkmcnt(0)\ns_barrier')
    ST_('xpre2')
    poll('h', 8, 36)
    ST_('hready')
    htag = []
    for c in range(4):
        for k in range(4):
            I = 16*c + k
            a(f's_add_u32 m0, s39, {1024*I}\ns_add_u32 s37, s38, {32768*I}\nbuffer_load_dwordx4 v7, s[8:11], s37 offen sc1 lds')
        htag.append(a.vtag())
    AC, AF, HF = 16, 40, 64
    GR = [4, 12]
    lt = {}
    def rdA(ks):
        ops = []
        if ks % 4 == 0: ops.append(lambda: (a.vwait(htag[ks//4]), a('s_barrier')))
        for t in range(2):
            r = AF + 8*(ks % 3) + 4*t
            ops.append(lambda r=r, t=t: a(f'ds_read_b64_tr_b16 {p2r(r)}, v{9+t} offset:{4096*ks}'))
            def f(r=r, t=t):
                a(f'ds_read_b64_tr_b16 {p2r(r+2)}, v{9+t} offset:{4096*ks+2048}'); lt[ks] = a.ltag()
            ops.append(f)
        return ops
    def rdH(ks):
        return [lambda: a(f'ds_read_b64_tr_b16 {p2r(HF+4*ks)}, v11 offset:{4096*ks}'), lambda: a(f'ds_read_b64_tr_b16 {p2r(HF+4*ks+2)}, v11 offset:{4096*ks+2048}')]
    for f in rdA(0) + rdA(1): f()
    ST_('xh1st')
    a.gapmode = True
    a.bg_set(iW1, cfg.get('bg_z2', 64), cfg.get('delay_z2', 256))
    RH, SQ = 128, 56
    for ks in range(16):
        fill = (rdA(ks+2) if ks + 2 < 16 else []) + (rdH(ks-1) if ks > 0 else [])
        a.lwait(lt[ks])
        seq = [(GR[t], AF + 8*(ks % 3) + 4*t, AF + 8*(ks % 3) + 4*t) for t in range(2)]
        seq += [(AC + 12*t + 4*b, AF + 8*(ks % 3) + 4*t, B2 + 4*(16*b+ks)) for b in range(3) for t in range(2)]
        for acc, A, B in seq:
            a(f'{MF} {q(acc)}, {q(A)}, {q(B)}, {"0" if ks == 0 else q(acc)}')
            if fill: fill.pop(0)()
    a.gapmode = False; a.bg_int = cfg.get('bg_ge', 64)
    for f in rdH(15): f()
    ST_('z2gemm')
    C1, C2, GT = 60, 62, 136
    a(f'v_mov_b32 v59, {fl(1e-5)}\nv_mov_b32 v58, 1.0')
    for t in range(2):
        g = GR[t]
        a(f'v_cndmask_b32 v{g}, v{g}, v{g+1}, s[40:41]\nv_cndmask_b32 v{g+2}, v{g+2}, v{g+3}, s[40:41]')
    for t in range(2): a(f'v_cndmask_b32 v{GR[t]}, v{GR[t]}, v{GR[t]+2}, s[44:45]')
    for t in range(2): a(f'v_fmamk_f32 v{GR[t]}, v{GR[t]}, {fl(1/512)}, v59')
    for t in range(2): a(f'v_rsq_f32 v{GR[t]}, v{GR[t]}')
    for t in range(2): a(f'v_cndmask_b32 v{SQ+t}, 0, v{GR[t]}, s[32:33]')
    for t in range(2): a(f'{MF32} {q(RH+4*t)}, v{SQ+t}, v58, 0')
    c1 = -2*math.log2(math.e)*math.sqrt(2/math.pi)
    a(f'v_mov_b32 v{C1}, {fl(c1)}\nv_mov_b32 v{C1+1}, {fl(c1)}\nv_mov_b32 v{C2}, {fl(c1*0.044715)}\nv_mov_b32 v{C2+1}, {fl(c1*0.044715)}')
    st_addr()
    a(f's_cmp_eq_u32 s40, 1\ns_cselect_b64 vcc, -1, 0\nv_cndmask_b32 v{SQ}, v{SQ}, v{SQ+1}, vcc')
    V.update(wsp=4, wr=5)
    a(f's_lshl_b32 s7, s34, 14\ns_add_u32 s7, s7, {LY}')
    wsp_addr()
    a('''v_and_b32 v12, 60, v1
    v_lshlrev_b32 v12, 2, v12
    v_and_b32 v13, 3, v1
    v_lshl_add_u32 v13, v13, 8, v12
    s_mov_b32 s44, 0x11111111
    s_mov_b32 s45, 0x11111111''')
    a('s_waitcnt lgkmcnt(0)\ns_barrier')
    WS.update(S=16, k0=W['d'])
    a.bg_set(w_items(64 - W['d'], cfg.get('D2', 12)) + w_flush(), a.bg_int)
    prs = []
    for t in range(2):
        for b in range(3):
            for h in (0, 2):
                r = AC + 12*t + 4*b + h
                a(f'v_pk_mul_f32 {p2r(r)}, {p2r(r)}, {p2r(RH+4*t+h)}'); prs.append(r)
    gelu(a, prs, C1, C2, GT)
    SS = 144
    for step in range(3):
        for t in range(2):
            for h in (0, 2):
                z = lambda b: p2r(AC + 12*t + 4*b + h)
                S_, Q_ = p2r(SS+4*t+h), p2r(SS+8+4*t+h)
                if step == 0: a(f'v_pk_add_f32 {S_}, {z(0)}, {z(1)}\nv_pk_mul_f32 {Q_}, {z(0)}, {z(0)}')
                if step == 1: a(f'v_pk_add_f32 {S_}, {S_}, {z(2)}\nv_pk_fma_f32 {Q_}, {z(1)}, {z(1)}, {Q_}')
                if step == 2: a(f'v_pk_fma_f32 {Q_}, {z(2)}, {z(2)}, {Q_}')
    D1, D2 = 160, 168
    for k in range(8): a(f'v_add_f32_dpp v{D1+k}, v{SS+k}, v{SS+k} row_ror:8 row_mask:0xf bank_mask:0x3')
    for k in range(8): a(f'v_add_f32_dpp v{D1+k}, v{SS+8+k}, v{SS+8+k} row_ror:8 row_mask:0xf bank_mask:0xc')
    for k in range(4): a(f'v_add_f32_dpp v{D2+k}, v{D1+k}, v{D1+k} row_half_mirror row_mask:0xf bank_mask:0x5')
    for k in range(4): a(f'v_add_f32_dpp v{D2+k}, v{D1+4+k}, v{D1+4+k} row_half_mirror row_mask:0xf bank_mask:0xa')
    for k in range(4): a(f'v_add_f32_dpp v{D2+k}, v{D2+k}, v{D2+k} quad_perm:[1,0,3,2] row_mask:0xf bank_mask:0xf')
    for k in range(4): a(f'v_add_f32_dpp v{D2+k}, v{D2+k}, v{D2+k} quad_perm:[2,3,0,1] row_mask:0xf bank_mask:0xf')
    a(f's_mov_b64 exec, s[44:45]\nbuffer_store_dwordx4 {q(D2)}, v12, s[8:11], s36 offen sc1\ns_mov_b64 exec, -1')
    ST_('stats_pub')
    a.bg_off()
    while any(x for x in a.bgq if x[-1][1].__qualname__.count('dma_items')): a.bg_drain(1)
    a.vwait(sW1['tag'])
    a('s_barrier')
    Z1 = 176
    a(f'v_add_u32 v6, 49152, v0')
    ring = [200 + 4*k for k in range(14)]
    NR = len(ring); lt = {}
    def rdW(x):
        ks, b = divmod(x, 6)
        a(f'ds_read_b128 {q(ring[x % NR])}, v{0 if b < 3 else 6} offset:{((b%3)*16+ks)*1024}'); lt[x] = a.ltag()
    for x in range(NR-1): rdW(x)
    print('bg left at z1', len(a.bgq), file=sys.stderr)
    nz = cfg.get('z1_bg_every', 6)
    for x in range(96):
        ks, b = divmod(x, 6)
        a.lwait(lt[x])
        a(f'{MF} {q(Z1+4*b)}, {q(ring[x % NR])}, {q(HF+4*ks)}, {"0" if ks == 0 else q(Z1+4*b)}')
        if x + NR - 1 < 96: rdW(x + NR - 1)
        if x % nz == nz-1: a.bg_drain(1)
    a.bg_drain()
    a('s_waitcnt lgkmcnt(0)')
    iQ, sQ = dma_items(8, 16, 65536, LY, QF)
    ST_('z1gemm')
    SG = 144
    a('s_mov_b32 s43, 0')
    a.label('st_poll')
    for r in range(4): a(f'buffer_load_dwordx4 {q(SG+4*r)}, v13, s[8:11], s39 offen offset:{1024*r} sc1')
    a(f'''s_add_u32 s43, s43, 1
    s_waitcnt vmcnt(0)
    v_max3_u32 v15, v{SG}, v{SG+4}, v{SG+8}
    v_max3_u32 v15, v15, v{SG+12}, v{SG+3}
    v_max3_u32 v15, v15, v{SG+7}, v{SG+11}
    v_max_u32 v15, v15, v{SG+15}
    v_cmp_eq_u32 vcc, -1, v15
    s_cmp_ge_u32 s43, {LIMIT}
    s_cbranch_scc1 st_go
    s_cbranch_vccnz st_poll''')
    a.label('st_go')
    ST_('stats_got')
    a.bg_set(iQ[:cfg.get('q_pre', 6)], cfg.get('bg_q', 64))
    for h in (0, 2): a(f'v_pk_add_f32 {p2r(SG+h)}, {p2r(SG+h)}, {p2r(SG+4+h)}\nv_pk_add_f32 {p2r(SG+8+h)}, {p2r(SG+8+h)}, {p2r(SG+12+h)}')
    for h in (0, 2): a(f'v_pk_add_f32 {p2r(SG+h)}, {p2r(SG+h)}, {p2r(SG+8+h)}')
    a(f'v_mov_b32 v57, {fl(1/688)}')
    for k in range(4): a(f'v_add_f32_dpp v{SG+k}, v{SG+k}, v{SG+k} quad_perm:[1,0,3,2] row_mask:0xf bank_mask:0xf')
    for k in range(4): a(f'v_add_f32_dpp v{SG+k}, v{SG+k}, v{SG+k} quad_perm:[2,3,0,1] row_mask:0xf bank_mask:0xf')
    MN, VR = 152, 160
    for k in range(4): a(f'v_mul_f32 v{SG+k}, v57, v{SG+k}')
    for k in range(4): a(f'v_add_f32_dpp v{SG+4+k}, v{SG+k}, v59 row_ror:8 row_mask:0xf bank_mask:0xf')
    for h in (0, 2): a(f'v_pk_fma_f32 {p2r(SG+4+h)}, {p2r(SG+h)}, {p2r(SG+h)}, {p2r(SG+4+h)}{NEG1}')
    for k in range(4): a(f'v_max_f32 v{SG+4+k}, v59, v{SG+4+k}')
    for k in range(4): a(f'v_rsq_f32 v{SG+4+k}, v{SG+4+k}')
    for h in (0, 2): a(f'v_pk_mul_f32 {p2r(SG+h)}, {p2r(SG+h)}, {p2r(SG+4+h)}')
    for t in range(2):
        for k in range(4): a(f'v_mov_b32_dpp v{VR+4*t+k}, v{SG+4+k} row_newbcast:{4*t} row_mask:0xf bank_mask:0xf')
    for t in range(2):
        for k in range(4): a(f'v_mov_b32_dpp v{MN+4*t+k}, v{SG+k} row_newbcast:{4*t} row_mask:0xf bank_mask:0xf')
    a(f'''s_mul_i32 s36, s57, 6
    s_mul_i32 s37, s40, 3
    s_add_u32 s36, s36, s37
    s_lshl_b32 s36, s36, 6
    s_add_u32 s36, s36, s38
    s_lshl_b32 s36, s36, 10''')
    a.bg_off()
    for b in range(3):
        for t in range(2):
            for h in (0, 2):
                r = AC + 12*t + 4*b + h
                a(f'v_pk_fma_f32 {p2r(r)}, {p2r(r)}, {p2r(VR+4*t+h)}, {p2r(MN+4*t+h)} neg_lo:[0,0,1] neg_hi:[0,0,1]')
        for t in range(2):
            for h in (0, 2):
                r = AC + 12*t + 4*b + h
                a(f'v_cvt_pk_bf16_f32 v{40+4*b+2*t+h//2}, v{r}, v{r+1}')
        a(f'buffer_store_dwordx4 {q(40+4*b)}, v0, s[24:27], s36 offen sc1\ns_add_u32 s36, s36, 65536')
    ztag = a.vtag()
    ST_('xz2n_st')
    a(f'''s_lshr_b32 s36, s60, 12
    v_lshrrev_b32 v12, 2, v2
    v_lshlrev_b32 v12, 3, v12
    v_and_b32 v13, 3, v2
    v_add3_u32 v12, v12, v13, s36
    v_lshlrev_b32 v13, 1, v12
    buffer_load_ushort v52, v13, s[52:55], 0 offen
    v_lshlrev_b32 v13, 2, v12
    s_mov_b32 s36, {MX}
    buffer_load_dword v53, v13, s[8:11], s36 offen sc1''')
    a.bg_set(iQ[cfg.get('q_pre', 6):], cfg.get('bg_q2', 48))
    a(f'{MF32} {q(RH)}, v58, v{SQ}, 0')
    a(f'''s_lshl_b32 s36, s57, 6
    s_add_u32 s36, s36, s38
    s_lshl_b32 s36, s36, 1
    s_add_u32 s36, s36, s40
    s_lshl_b32 s36, s36, 6
    s_add_u32 s36, s36, {FLZ}''')
    prs = []
    for r in range(Z1, Z1+24, 2):
        a(f'v_pk_mul_f32 {p2r(r)}, {p2r(r)}, {p2r(RH)}'); prs.append(r)
    gelu(a, prs[:8], C1, C2, GT)
    a.bg_off(); a.bg_drain()
    a.vwait(ztag)
    flag(36)
    ST_('zflag')
    gelu(a, prs[8:], C1, C2, GT)
    iO, sO = dma_items(8, 22, 90112, LX, WO)
    a.vwait(sQ['tag'])
    a('s_barrier')
    HA = 16
    for mb in range(4): a(f'v_mov_b32 v{32+mb}, v53')
    a(f'v_add_u32 v6, {LY}, v0')
    lt = {}
    def rdQ(x):
        ks, mb = divmod(x, 4)
        a(f'ds_read_b128 {q(ring[x % NR])}, v6 offset:{(mb*16+ks)*1024}'); lt[x] = a.ltag()
    a.bg_set(iO, 0); a.bg_drain(cfg.get('o_pre', 4))
    for x in range(NR-1): rdQ(x)
    BV = 36
    a(f'v_lshlrev_b32 v{BV}, 16, v52')
    for k in range(1, 4): a(f'v_mov_b32 v{BV+k}, v{BV}')
    a(f'''v_and_b32 v8, 31, v1
    v_lshlrev_b32 v8, 6, v8
    s_lshl_b32 s36, s57, 2
    s_add_u32 s36, s36, s34
    s_lshl_b32 s36, s36, 11
    s_add_u32 s36, s36, {FLZ}
    s_mul_i32 s37, s57, {6*65536}
    s_lshl_b32 s41, s34, 14
    s_add_u32 s37, s37, s41
    v_add_u32 v7, s37, v0''')
    for tau in range(1, 4):
        a(f's_add_u32 s41, s34, {tau}\ns_and_b32 s41, s41, 3\ns_mul_i32 s41, s41, 3072\ns_add_u32 s41, s41, {LY+(tau-1)*1024}\nv_add_u32 v{8+tau}, s41, v0')
    a(f's_mul_i32 s41, s34, 3072\ns_add_u32 s41, s41, {LY}\nv_add_u32 v13, s41, v0')
    a(f'''s_mul_i32 s41, s57, {3*131072}
    s_lshl_b32 s42, s56, 2
    s_add_u32 s42, s42, s34
    s_mul_i32 s38, s42, 1536
    s_add_u32 s38, s38, {FLP}
    s_lshl_b32 s39, s57, 6
    s_add_u32 s39, s39, s38
    s_lshl_b32 s42, s42, 10
    s_add_u32 s41, s41, s42
    v_add_u32 v4, s42, v0
    v_and_b32 v5, 7, v1
    v_lshlrev_b32 v5, 6, v5
    v_lshlrev_b32 v12, 10, v12
    v_lshl_add_u32 v12, v3, 5, v12
    v_mov_b32 v14, 0
    v_mov_b32 v15, s4''')
    for x in range(64):
        ks, mb = divmod(x, 4)
        a.lwait(lt[x])
        a(f'{MF} {q(HA+4*mb)}, {q(ring[x % NR])}, {q(HF+4*ks)}, {q(32) if ks == 0 else q(HA+4*mb)}')
        if x + NR - 1 < 64: rdQ(x + NR - 1)
        if x % 3 == 2: a.bg_drain(1)
    a.bg_drain()
    ST_('hgemm')
    poll('z', 8, 36, 40)
    ST_('zready')
    ZB, GA, RD, PP = 48, 200, 232, 244
    ZD = cfg.get('ZD', 30)
    ztags = {}
    def ldZ(x):
        blk, ks = divmod(x, 16)
        a(f'buffer_load_dwordx4 {q(ZB+4*(x%32))}, v7, s[24:27], s{64+(ks>>1)} offen offset:{1024*(ks&1)} sc1')
        ztags[x] = a.vtag()
        if ks == 15: a('v_add_u32 v7, 65536, v7')
    ptag = {}
    def red_items(blk, last=False):
        g0 = GA + 16*(blk & 1); it = []
        for tau in range(1, 4): it.append(f'ds_write_b128 v{8+tau}, {q(GA+16*(blk&1)+4*tau)} offset:{12288*(blk&1)}')
        it += [None]*cfg.get('red_gap1', 6)
        it.append('s_waitcnt lgkmcnt(0)\ns_barrier')
        for k in range(3): it.append(f'ds_read_b128 {q(RD+4*k)}, v13 offset:{12288*(blk&1)+1024*k}')
        it += [None]*cfg.get('red_gap2', 5)
        it.append('s_waitcnt lgkmcnt(0)')
        for h in range(4): it.append(f'v_add_f32 v{RD+h}, v{RD+h}, v{RD+4+h}\nv_add_f32 v{RD+8+h}, v{RD+8+h}, v{g0+h}')
        for h in (0, 2): it.append(f'v_add_f32 v{RD+h}, v{RD+h}, v{RD+8+h}\nv_add_f32 v{RD+h+1}, v{RD+h+1}, v{RD+8+h+1}')
        for h in (0, 2): it.append(f'v_mul_f32 v{RD+h}, v{RD+h}, v{Z1+4*blk+h}\nv_mul_f32 v{RD+h+1}, v{RD+h+1}, v{Z1+4*blk+h+1}')
        pp = PP + 4*((blk >> 1) & 1)
        it.append(f'v_cvt_pk_bf16_f32 v{pp+2*(blk&1)}, v{RD}, v{RD+1}\nv_cvt_pk_bf16_f32 v{pp+2*(blk&1)+1}, v{RD+2}, v{RD+3}')
        if blk & 1:
            def st():
                a(f'buffer_store_dwordx4 {q(pp)}, v0, s[28:31], s41 offen sc1'); ptag[blk >> 1] = a.vtag()
            it += [st, f's_add_u32 s41, s41, 131072']
        return it
    def pflag(pp):
        a.vwait(ptag[pp])
        a(f's_mov_b64 exec, 1\nbuffer_store_dword v15, v14, s[8:11], s39 offen offset:{512*pp} sc1\ns_mov_b64 exec, -1')
    preg = lambda ks: 48 + 32*(ks % 3) - 4*(ks % 3 == 2) + 4*(ks // 3)
    pt = {}; qt = {}
    def pq(pp):
        a(f'buffer_load_dword v40, v5, s[8:11], s38 offen offset:{512*pp} sc1'); qt[pp] = a.vtag()
    def pchk(pp):
        a.vwait(qt[pp])
        a(f's_add_u32 s36, s38, {512*pp}\nv_cmp_ne_u32 vcc, s4, v40\ns_cbranch_vccz p{pp}_go')
        nv = a.nvm
        poll(f'p{pp}', 5, 36, 40)
        a.nvm = nv
    def pld(pp):
        for jj in range(8):
            ks = 3*jj + pp
            if ks < 22:
                a(f's_mov_b32 s36, {ks*131072}\nbuffer_load_dwordx4 {q(preg(ks))}, v4, s[28:31], s36 offen sc1'); pt[ks] = a.vtag()
    for x in range(ZD): ldZ(x)
    a('s_barrier')
    for blk in range(6):
        it = [None]*4 + red_items(blk-1) if blk > 0 else []
        assert len(it) <= 44
        for ks in range(16):
            x = 16*blk + ks
            a.vwait(ztags[x])
            for tau in range(4):
                acc = GA + 16*(blk & 1) + 4*tau
                c = q(acc) if ks else (q(BV) if tau == 0 else '0')
                a(f'{MF} {q(acc)}, {q(ZB+4*(x%32))}, {q((ks*4+tau)*4,"a")}, {c}')
                if tau == 0 and x + ZD < 96: ldZ(x + ZD)
                elif it:
                    y = it.pop(0)
                    if callable(y): y()
                    elif y: a(y)
            if blk == 4 and ks == 10: pflag(0)
            if blk == 5 and ks == cfg.get('p0_poll', 4): pq(0)
            if blk == 5 and ks == cfg.get('p0_chk', 10): pchk(0); pflag(1); pld(0)
    for y in red_items(5):
        if callable(y): y()
        elif y: a(y)
    ST_('gemm2')
    a('v_add_u32 v6, 45056, v0')
    ring = [140 + 4*k for k in range(24)]; NR = len(ring)
    seq = [(3*jj+pp, mb) for pp in range(3) for jj in range(8) if 3*jj+pp < 22 for mb in range(4)]
    lt = {}
    def rdO(x):
        ks, mb = seq[x]
        a(f'ds_read_b128 {q(ring[x % NR])}, v{0 if mb < 2 else 6} offset:{((mb&1)*22+ks)*1024}'); lt[x] = a.ltag()
    X = [0]
    def g3(pp, mid=None):
        n = 0
        while X[0] < len(seq) and seq[X[0]][0] % 3 == pp:
            x = X[0]; ks, mb = seq[x]
            if mb == 0: a.vwait(pt[ks])
            a.lwait(lt[x])
            a(f'{MF} {q(HA+4*mb)}, {q(ring[x % NR])}, {q(preg(ks))}, {q(HA+4*mb)}')
            if x + NR - 1 < len(seq): rdO(x + NR - 1)
            X[0] += 1; n += 1
            if mid and n == mid[0]: mid[1]()
    for x in range(NR-1): rdO(x)
    g3(0, (cfg.get('p1_poll', 16), lambda: pq(1)))
    pflag(2); pchk(1); pld(1)
    g3(1, (cfg.get('p2_poll', 4), lambda: pq(2)))
    pchk(2)
    ST_('pready')
    pld(2); g3(2)
    a('s_lshl_b32 s36, s57, 7')
    for k in range(8): a(f'v_cvt_pk_bf16_f32 v{40+k}, v{HA+2*k}, v{HA+2*k+1}')
    a(f'buffer_store_dwordx4 {q(40)}, v12, s[48:51], s36 offen\nbuffer_store_dwordx4 {q(44)}, v12, s[48:51], s36 offen offset:16')
    if stamp:
        a('s_waitcnt vmcnt(0)')
        ST_('end')
        a(f's_waitcnt lgkmcnt(0)\ns_lshl_b32 s36, s2, 2\ns_add_u32 s36, s36, s34\ns_lshl_b32 s36, s36, 6\ns_add_u32 s36, s36, {DBG}\nv_mov_b32 v14, 0')
        for k in range(16): a(f'v_mov_b32 v{16+k}, s{72+2*min(k, len(names)-1)}')
        a('s_mov_b64 exec, 1')
        for k in range(4): a(f'buffer_store_dwordx4 {q(16+4*k)}, v14, s[8:11], s36 offen offset:{16*k}')
    a.label('k_done')
    a('s_endpgm')
    assert len(names) <= 15
    a.raw('.fill 4096, 4, 0')
    out = '; @launch grid=(256,1,1) block=(256,1,1) lds=163840\n' + a.text() + '.section .rodata,"a"\n' + kdesc(KNAME, 512, 102, 256)
    return out, names

if __name__ == '__main__':
    out, names = gen(len(sys.argv) > 2 and sys.argv[2] == 'stamp')
    open(sys.argv[1], 'w').write(out); print(names)
```
